```python
import torch

def _softmax(x, axis=-1):
    return torch.softmax(x, dim=axis)

def _gelu(x):
    return torch.nn.functional.gelu(x, approximate='tanh')

def _silu(x):
    return torch.nn.functional.silu(x)

def _sigmoid(x):
    return torch.sigmoid(x)

def _layernorm(x, axis=-1, eps=1e-05):
    m = x.mean(dim=axis, keepdim=True)
    v = x.var(dim=axis, keepdim=True, unbiased=False)
    return (x - m) / torch.sqrt(v + eps)

def _scatter_add(tgt, idx, src, axis=0):
    return tgt.clone().index_add_(axis, idx, src)

def _segment_sum(src, seg, n):
    out = torch.zeros((n,) + src.shape[1:], dtype=src.dtype)
    return out.index_add_(0, seg, src)

def _pad(x, pw):
    flat = tuple((v for pair in reversed(pw) for v in pair))
    return torch.nn.functional.pad(x, flat)
kernel_name = 'sequential_preLN__mha_block__mixer_gmlp__prompt'

def setup_inputs():

    _w = lambda a: (lambda t: t.to(torch.bfloat16) if t.is_floating_point() else t)(torch.as_tensor(a))

    def _A_setup():
        B, S, D, H = (1, 2048, 576, 32)
        return {'x': _w((lambda *s: torch.randn(*s, dtype=torch.bfloat16) * 0.05)(B, S, D)), 'wqkv': _w((lambda *s: torch.randn(*s, dtype=torch.bfloat16) * 0.05)(D, 3 * D)), 'wo': _w((lambda *s: torch.randn(*s, dtype=torch.bfloat16) * 0.05)(D, D))}
    _A_in = _A_setup()

    def _B_setup():
        B, S, D, F = (1, 2048, 576, 4608)
        Fh = F // 2
        return {'x': _w((lambda *s: torch.randn(*s, dtype=torch.bfloat16) * 0.05)(B, S, D)), 'w_in': _w((lambda *s: torch.randn(*s, dtype=torch.bfloat16) * 0.8)(D, 2 * Fh)), 'w_sp': _w(0.01 * (lambda *s: torch.randn(*s, dtype=torch.bfloat16) * 0.8)(S, S)), 'b_sp': _w(1.0 + 0.01 * (lambda *s: torch.randn(*s, dtype=torch.bfloat16) * 0.05)(S)), 'w_out': _w((lambda *s: torch.randn(*s, dtype=torch.bfloat16) * 0.05)(Fh, D))}
    _B_in = _B_setup()
    return {'A_x': _A_in['x'], 'A_wqkv': _A_in['wqkv'], 'A_wo': _A_in['wo'], 'B_x': _B_in['x'], 'B_w_in': _B_in['w_in'], 'B_w_sp': _B_in['w_sp'], 'B_b_sp': _B_in['b_sp'], 'B_w_out': _B_in['w_out']}

def reference(A_x, A_wqkv, A_wo, B_x, B_w_in, B_w_sp, B_b_sp, B_w_out):

    def _A_ref(x, wqkv, wo):
        B, S, D = x.shape
        H = 32
        Dh = D // H
        qkv = (lambda x, *d: x.permute(*d))((x @ wqkv).reshape(B, S, 3, H, Dh), 2, 0, 3, 1, 4)
        q, k, v = (qkv[0], qkv[1], qkv[2])
        scores = torch.einsum('bhqd,bhkd->bhqk', q, k) * Dh ** (-0.5)
        p = _softmax(scores, axis=-1)
        o = torch.einsum('bhqk,bhkd->bhqd', p, v)
        return (lambda x, *d: x.permute(*d))(o, 0, 2, 1, 3).reshape(B, S, D) @ wo

    def _B_ref(x, w_in, w_sp, b_sp, w_out):
        B, S, D = x.shape
        F = w_in.shape[-1]
        Fh = F // 2
        z = _gelu(torch.einsum('bsd,df->bsf', x, w_in))
        z1 = z[..., :Fh].clone()
        z2 = _layernorm(z[..., Fh:], axis=-1)
        g = torch.einsum('ts,bsf->btf', w_sp, z2) + b_sp[None, :, None]
        return torch.einsum('bsf,fd->bsd', z1 * g, w_out)
    x = A_x
    h = x + _A_ref(_layernorm(x, axis=-1), A_wqkv, A_wo)
    h2 = h + _B_ref(_layernorm(h, axis=-1), B_w_in, B_w_sp, B_b_sp, B_w_out)
    return h2
```

```python
import re

HEADER_COMMENT = """; Kernarg layout for this problem (88 bytes, ptrs only, base s[0:1]):
"""

REG_RE = re.compile(r'\b([vas])(\d+)\b|\b([vas])\[(\d+):(\d+)\]')

def regs_of(op):
    out = []
    for m in REG_RE.finditer(op):
        if m.group(1):
            out.append((m.group(1), int(m.group(2))))
        else:
            for i in range(int(m.group(4)), int(m.group(5)) + 1):
                out.append((m.group(3), i))
    if re.search(r'\bvcc\b', op):
        out += [('s', 106), ('s', 107)]
    if re.search(r'\bexec\b', op):
        out += [('s', 126), ('s', 127)]
    if re.search(r'\bm0\b', op):
        out += [('s', 124)]
    return out

TRANS = ('v_exp_f32', 'v_log_f32', 'v_rcp_f32', 'v_rsq_f32', 'v_sqrt_f32', 'v_sin_f32', 'v_cos_f32', 'v_rcp_iflag_f32', 'v_exp_f16', 'v_rcp_f16')

class Ins:
    __slots__ = ('text', 'op', 'dst', 'src', 'kind', 'passes', 'srcc', 'nops', 'dpp', 'store_data')
    def __init__(self, text):
        self.text = text
        t = text.split(';')[0].strip()
        parts = t.split(None, 1)
        self.op = parts[0] if parts else ''
        ops = []
        if len(parts) > 1:
            depth = 0; cur = ''
            for ch in parts[1]:
                if ch == '[': depth += 1
                if ch == ']': depth -= 1
                if ch == ',' and depth == 0:
                    ops.append(cur.strip()); cur = ''
                else:
                    cur += ch
            ops.append(cur.strip())
        op = self.op
        self.dst = []; self.src = []; self.kind = 'other'; self.passes = 0; self.srcc = []; self.nops = 1
        self.dpp = ('row_' in t or 'quad_perm' in t or 'wave_' in t)
        self.store_data = []
        R = [regs_of(o) for o in ops]
        flat = lambda L: [x for l in L for x in l]
        if op.startswith('v_mfma'):
            self.kind = 'mfma'
            self.dst = R[0]; self.src = flat(R[1:3]); self.srcc = R[3] if len(R) > 3 else []
            if '32x32x16' in op or '32x32x8' in op: self.passes = 8
            elif '16x16x32' in op or '16x16x16' in op: self.passes = 4
            else: raise ValueError('unknown mfma ' + op)
        elif op.startswith('v_'):
            self.kind = 'valu'
            if op.startswith('v_permlane') and 'swap' in op:
                self.dst = flat(R[0:2]); self.src = flat(R[0:2])
            elif op.startswith('v_cmp'):
                self.dst = R[0]; self.src = flat(R[1:])
            elif op in ('v_add_co_u32', 'v_sub_co_u32', 'v_addc_co_u32', 'v_subb_co_u32', 'v_mad_u64_u32', 'v_div_scale_f32'):
                self.dst = flat(R[0:2]); self.src = flat(R[2:])
            elif op == 'v_nop':
                pass
            else:
                self.dst = R[0]; self.src = flat(R[1:])
                if op.startswith(('v_fmac', 'v_pk_fmac', 'v_dot2c', 'v_dot4c', 'v_writelane')) or 'dst_unused:UNUSED_PRESERVE' in t:
                    self.src = self.src + R[0]
                if self.dpp:
                    self.src = self.src + R[0]
            if op.split('_e')[0] in TRANS: self.kind = 'trans'
        elif op.startswith(('buffer_', 'global_')):
            self.kind = 'vmem'
            if ' lds' in (' ' + t) and op.startswith('buffer_load'):
                self.src = flat(R) + [('s', 124)]
            elif op.startswith('global_load_lds'):
                self.src = flat(R) + [('s', 124)]
            elif '_load' in op:
                self.dst = R[0]; self.src = flat(R[1:])
            elif op.startswith('buffer_store') or op.startswith('buffer_atomic'):
                self.src = flat(R); self.store_data = R[0] if ('x4' in op or 'x3' in op) else []
                if 'atomic' in op and 'sc0' in t: self.dst = R[0]
            else:
                self.src = flat(R); self.store_data = R[1] if ('x4' in op or 'x3' in op) else []
        elif op.startswith('ds_'):
            self.kind = 'ds'
            if op.startswith(('ds_read', 'ds_bpermute', 'ds_permute', 'ds_swizzle')):
                self.dst = R[0]; self.src = flat(R[1:])
            else:
                self.src = flat(R)
        elif op == 's_nop':
            self.kind = 'nop'; self.nops = int(ops[0], 0) + 1
        elif op.startswith('s_'):
            self.kind = 'salu'
            if op.startswith(('s_cmp', 's_cbranch', 's_branch', 's_waitcnt', 's_barrier', 's_endpgm', 's_setprio', 's_sleep', 's_bitcmp')):
                self.src = flat(R)
            else:
                self.dst = R[0] if R else []; self.src = flat(R[1:])
                if 'saveexec' in op: self.dst = self.dst + [('s', 126), ('s', 127)]

def check_hazards(inss, name=''):
    probs = []
    n = len(inss)
    for i, c in enumerate(inss):
        if c.kind in ('label',): continue
        dist = 0
        j = i - 1
        csrc = set(c.src); cdst = set(c.dst); csrcc = set(c.srcc)
        while j >= 0 and dist < 24:
            p = inss[j]
            pd = set(p.dst)
            need = 0; why = ''
            def upd(k, w):
                nonlocal need, why
                if k > need: need, why = k, w
            if p.kind in ('valu', 'trans'):
                vd = {r for r in pd if r[0] in 'va'}
                sd = {r for r in pd if r[0] == 's'}
                if c.kind == 'mfma' and vd & (csrc | csrcc): upd(2, 'valu->mfma')
                if p.kind == 'trans' and c.kind in ('valu', 'mfma') and vd & (csrc | csrcc): upd(1, 'trans->valu')
                if c.kind in ('valu', 'trans') and c.op.startswith(('v_readlane', 'v_readfirstlane')) and vd & csrc: upd(1, 'valu->readlane')
                if c.kind in ('valu', 'trans') and c.dpp and vd & csrc: upd(2, 'valu->dpp')
                if c.op.startswith('v_permlane') and vd & csrc: upd(2, 'valu->permlane')
                if c.kind == 'vmem' and sd & csrc: upd(5, 'valu sgpr->vmem')
                if c.kind in ('valu', 'trans') and sd & csrc:
                    if c.op.startswith(('v_readlane', 'v_writelane')): upd(4, 'valu sgpr->lanesel')
                    else: upd(2, 'valu sgpr->valu')
                if ('s', 126) in sd and c.kind in ('valu', 'trans', 'mfma'): upd(5, 'valu exec->')
            if p.kind == 'mfma':
                ps = p.passes
                if c.kind == 'mfma':
                    if pd & csrcc:
                        if set(c.srcc) == pd and c.passes == ps: upd(0, '')
                        else: upd(ps + 2, 'mfma->mfma srcC overlap')
                    if pd & csrc: upd(ps + 4, 'mfma->mfma AB')
                    if pd & cdst and not (pd & csrcc): upd(ps + 4, 'mfma->mfma WAW')
                elif c.kind in ('valu', 'trans', 'vmem', 'ds'):
                    if pd & (csrc | cdst): upd(ps + 4, 'mfma->valu/mem')
                if c.kind in ('valu', 'trans') and set(p.srcc) & cdst: upd(ps - 1, 'mfma srcC WAR')
            if p.kind == 'salu' and ('s', 124) in pd and c.kind == 'vmem' and ('s', 124) in csrc: upd(1, 'm0->ldsdma')
            if p.kind == 'vmem' and p.store_data and set(p.store_data) & cdst:
                upd(2 if c.kind in ('valu', 'trans') else 1, 'store data WAR')
            if need > dist:
                probs.append('%s: [%d] "%s" -> [%d] "%s": need %d have %d (%s)' % (name, j, p.text.strip(), i, c.text.strip(), need, dist, why))
            dist += p.nops if p.kind != 'label' else 0
            j -= 1
    return probs

class Kernel:
    def __init__(self, name):
        self.name = name
        self.items = []
        self.nv = 0; self.na = 0; self.ns = 0
        self.uid = 0
    def __call__(self, text):
        for line in text.strip('\n').split('\n'):
            s = line.strip()
            if not s or s.startswith(';'):
                if s: self.items.append(('raw', '    ' + s))
                continue
            if s.endswith(':'):
                self.items.append(('label', s[:-1])); continue
            if s.startswith('.'):
                self.items.append(('raw', s)); continue
            self.items.append(Ins(s))
    def label(self, l): self.items.append(('label', l))
    def newlabel(self, base='L'):
        self.uid += 1
        return '%s_%s_%d' % (base, self.name, self.uid)
    def comment(self, c): self.items.append(('raw', '    ; ' + c))
    def instrs(self):
        return [x for x in self.items if isinstance(x, Ins)]
    def maxregs(self):
        mv = ma = ms = -1
        for x in self.instrs():
            for (k, i) in x.dst + x.src + x.srcc:
                if k == 'v': mv = max(mv, i)
                elif k == 'a': ma = max(ma, i)
                elif k == 's' and i < 102: ms = max(ms, i)
        return mv + 1, ma + 1, ms + 1
    def check(self):
        inss = self.instrs()
        probs = check_hazards(inss, self.name)
        pos = {}; idx = 0; seq = []
        for x in self.items:
            if isinstance(x, Ins): seq.append(x); idx += 1
            elif x[0] == 'label': pos[x[1]] = idx
        for i, x in enumerate(seq):
            if x.op.startswith(('s_cbranch', 's_branch')):
                tgt = x.text.split()[1]
                if tgt in pos:
                    t = pos[tgt]
                    a = seq[max(0, i - 30): i + 1]; b = seq[t: t + 30]
                    ps = check_hazards(a + b, self.name + '(br %s)' % tgt)
                    for p in ps:
                        m = re.search(r'\[(\d+)\].*-> \[(\d+)\]', p)
                        if int(m.group(1)) < len(a) <= int(m.group(2)): probs.append(p)
        return probs
    def text(self, wg_y=False):
        nv, na, ns = self.maxregs()
        acc = max(4, (nv + 3) // 4 * 4)
        nfv = acc + na if na else nv
        out = ['.globl %s' % self.name, '.p2align 8', '.type %s,@function' % self.name, '%s:' % self.name]
        for x in self.items:
            if isinstance(x, Ins): out.append('    ' + x.text)
            elif x[0] == 'label': out.append(x[1] + ':')
            else: out.append(x[1])
        desc = ['.amdhsa_kernel %s' % self.name,
                '  .amdhsa_next_free_vgpr %d' % max(nfv, 8),
                '  .amdhsa_next_free_sgpr %d' % max(ns, 16),
                '  .amdhsa_accum_offset %d' % acc,
                '  .amdhsa_group_segment_fixed_size 0',
                '  .amdhsa_kernarg_size 88',
                '  .amdhsa_user_sgpr_count 2',
                '  .amdhsa_user_sgpr_kernarg_segment_ptr 1',
                '  .amdhsa_system_sgpr_workgroup_id_x 1']
        if wg_y: desc.append('  .amdhsa_system_sgpr_workgroup_id_y 1')
        desc += ['  .amdhsa_float_denorm_mode_32 3', '  .amdhsa_float_denorm_mode_16_64 3', '  .amdhsa_ieee_mode 0', '  .amdhsa_dx10_clamp 0']
        desc.append('.end_amdhsa_kernel')
        return '\n'.join(out) + '\n', '\n'.join(desc) + '\n'

def build_file(launches, path, strict=True):
    s = HEADER_COMMENT
    for (k, g, b, lds) in launches:
        s += '; @launch kernel=%s grid=(%d,%d,%d) block=(%d,%d,%d) lds=%d\n' % (k.name, *g, *b, lds)
    s += '.amdgcn_target "amdgcn-amd-amdhsa--gfx950"\n.text\n'
    seen = []; descs = []
    allp = []
    for (k, g, b, lds) in launches:
        if k in seen: continue
        seen.append(k)
        t, d = k.text(wg_y=(g[1] > 1))
        s += t; descs.append(d)
        allp += k.check()
        nv, na, ns = k.maxregs()
        print('%-28s vgpr=%d agpr=%d sgpr=%d instrs=%d' % (k.name, nv, na, ns, len(k.instrs())))
    s += '.section .rodata,"a"\n'
    for d in descs:
        s += '.p2align 6\n' + d
    open(path, 'w').write(s)
    for p in allp: print('HAZARD', p)
    if allp and strict: raise SystemExit('hazards found')
    return s
```

```python
from asmlib import *
import math, struct

def f32bits(x): return struct.unpack('<I', struct.pack('<f', x))[0]
def hexf(x): return '0x%08x' % f32bits(x)

MB = 1 << 20
WS_Q = 0
WS_K = 3 * MB
WS_V = 6 * MB
WS_O = 9 * MB
WS_H = 12 * MB
WS_Z1 = 16 * MB
WS_Z2 = 26 * MB
WS_ST = 36 * MB
WS_U = 40 * MB
SZ_QK = 32 * 98304
SZ_V = 32 * 73728
SZ_X = 2048 * 576 * 2
SZ_Z = 2048 * 2304 * 2
SZ_ST = 2048 * 16 * 8

class VM:
    def __init__(self, k): self.k = k; self.q = []
    def issue(self, tag): self.q.append(tag)
    def wait(self, tag):
        idx = max([i for i, t in enumerate(self.q) if t == tag], default=-1)
        if idx < 0: return
        n = len(self.q) - 1 - idx
        assert n <= 63
        self.k(f's_waitcnt vmcnt({n})')
        self.q = self.q[idx + 1:]
    def count_after(self, tag):
        idx = max([i for i, t in enumerate(self.q) if t == tag], default=-1)
        return len(self.q) - 1 - idx

def load_ptrs(k):
    k('''
s_load_dwordx16 s[4:19], s[0:1], 0
s_load_dwordx2 s[20:21], s[0:1], 64
s_load_dwordx2 s[22:23], s[0:1], 80
''')

def srd_in(k, d, idx, size):
    k(f'''
s_mov_b32 s{d}, s{4+2*idx}
s_mov_b32 s{d+1}, s{5+2*idx}
s_mov_b32 s{d+2}, {size}
s_mov_b32 s{d+3}, 0x20000
''')
def srd_out(k, d):
    k(f'''
s_mov_b32 s{d}, s20
s_mov_b32 s{d+1}, s21
s_mov_b32 s{d+2}, {SZ_X}
s_mov_b32 s{d+3}, 0x20000
''')
def srd_ws(k, d, off, size):
    k(f'''
s_add_u32 s{d}, s22, {off}
s_addc_u32 s{d+1}, s23, 0
s_mov_b32 s{d+2}, {size}
s_mov_b32 s{d+3}, 0x20000
''')
```

```python
from common import *

L_K1 = 0
L_K2 = 65536
L_V = 73728
L_ONES = 147456
ATT_LDS = 151552

def gen_attn():
    name = 'attn_kernel'
    k = Kernel(name)
    vm = VM(k)
    End = f'L_end_{name}'
    vLane, vL16, vK2o = 1, 2, 3
    vK1a, vK2a, vVa, vVs = 4, 5, 6, 7
    Q1, Q2 = 8, 12
    KA = [16, 20]; KB = [24, 28]
    VA = [32, 36]
    S = [48, 64]
    P = 80
    O = 96
    T = 112
    sW, sHead, sQb, sTmp, sKb, sVb, sCnt = 40, 41, 42, 44, 46, 47, 48
    k(f's_cmp_ge_u32 s2, 256\ns_cbranch_scc1 {End}')
    load_ptrs(k)
    k(f'''
v_and_b32 v{vLane}, 63, v0
v_lshrrev_b32 v{T}, 6, v0
v_lshlrev_b32 v{vL16}, 4, v{vLane}
v_readfirstlane_b32 s{sW}, v{T}
s_and_b32 s{sHead}, s2, 7
s_lshl_b32 s{sHead}, s{sHead}, 2
s_lshr_b32 s{sTmp}, s2, 3
s_and_b32 s{sTmp}, s{sTmp}, 3
s_add_u32 s{sHead}, s{sHead}, s{sTmp}
s_lshr_b32 s{sQb}, s2, 5
s_waitcnt lgkmcnt(0)
''')
    srd_ws(k, 24, WS_Q, 9 * MB)
    srd_ws(k, 28, WS_O, SZ_X)
    k(f'''
s_lshl_b32 s{sTmp}, s{sQb}, 3
s_add_u32 s{sTmp}, s{sTmp}, s{sW}
s_mul_i32 s{sTmp}, s{sTmp}, 1536
s_mul_i32 s{sKb}, s{sHead}, 98304
s_add_u32 s{sTmp}, s{sTmp}, s{sKb}
v_and_b32 v{T}, 31, v{vLane}
v_lshlrev_b32 v{T}, 4, v{T}
buffer_load_dwordx4 v[{Q1}:{Q1+3}], v{vL16}, s[24:27], s{sTmp} offen
buffer_load_dword v{Q2}, v{T}, s[24:27], s{sTmp} offen offset:1024
v_lshrrev_b32 v{T+1}, 5, v{vLane}
v_mul_u32_u24 v{vK2o}, 1536, v{T+1}
v_add_u32 v{vK2o}, v{vK2o}, v{T}
v_add_u32 v{vK2o}, 1024, v{vK2o}
s_add_u32 s{sKb}, s{sKb}, {WS_K}
s_mul_i32 s{sVb}, s{sHead}, 73728
s_add_u32 s{sVb}, s{sVb}, {WS_V}
''')
    vm.issue('q'); vm.issue('q')
    for c in range(4):
        for j in range(2):
            k(f'''
s_lshl_b32 s{sTmp}, s{sW}, 1
s_add_u32 s{sTmp}, s{sTmp}, {16*c+j}
s_lshl_b32 m0, s{sTmp}, 10
s_mul_i32 s{sTmp}, s{sTmp}, 1536
s_add_u32 s{sTmp}, s{sTmp}, s{sKb}
buffer_load_dwordx4 v{vL16}, s[24:27], s{sTmp} offen lds
''')
            vm.issue(f'c{c}')
        k(f'''
s_add_u32 s{sTmp}, s{sW}, {8*c}
s_lshl_b32 s{sTmp+1}, s{sTmp}, 8
s_add_u32 m0, s{sTmp+1}, {L_K2}
s_mul_i32 s{sTmp}, s{sTmp}, 3072
s_add_u32 s{sTmp}, s{sTmp}, s{sKb}
buffer_load_dword v{vK2o}, s[24:27], s{sTmp} offen lds
''')
        vm.issue(f'c{c}')
        for j in range(3):
            if j < 2:
                k(f's_add_u32 s{sTmp}, s{sW}, {18*c+8*j}')
            else:
                k(f's_add_u32 s{sTmp}, s{sW}, {18*c+16}\ns_add_u32 s{sTmp+1}, s{sW}, {18*c+8}\ns_cmp_lt_u32 s{sW}, 2\ns_cselect_b32 s{sTmp}, s{sTmp}, s{sTmp+1}')
            k(f'''
s_lshl_b32 s{sTmp}, s{sTmp}, 10
s_add_u32 m0, s{sTmp}, {L_V}
s_add_u32 s{sTmp}, s{sTmp}, s{sVb}
buffer_load_dwordx4 v{vL16}, s[24:27], s{sTmp} offen lds
''')
            vm.issue(f'c{c}')
    k(f'''
v_mov_b32 v{T+2}, 0x3f803f80
v_mov_b32 v{T+3}, 0x3f803f80
v_lshlrev_b32 v{T+4}, 3, v0
v_add_u32 v{T+4}, {L_ONES}, v{T+4}
ds_write_b64 v{T+4}, v[{T+2}:{T+3}]
''')
    for r in (Q2+1, Q2+2, Q2+3, KB[0]+1, KB[0]+2, KB[0]+3, KB[1]+1, KB[1]+2, KB[1]+3): k(f'v_mov_b32 v{r}, 0')
    for i in range(16): k(f'v_mov_b32 v{O+i}, 0')
    k(f'''
v_mov_b32 v{vK1a}, v{vL16}
v_and_b32 v{T}, 31, v{vLane}
v_lshlrev_b32 v{vK2a}, 2, v{T}
v_add_u32 v{vK2a}, {L_K2}, v{vK2a}
v_lshrrev_b32 v{T+1}, 5, v{vLane}
v_mul_u32_u24 v{T+1}, 288, v{T+1}
v_lshl_add_u32 v{T+1}, v{T}, 4, v{T+1}
v_add_u32 v{T+1}, {L_V}, v{T+1}
v_cmp_gt_u32 vcc, 18, v{T}
v_mov_b32 v{T+2}, {L_ONES}
v_mov_b32 v{T+3}, 2304
v_cndmask_b32 v{vVa}, v{T+2}, v{T+1}, vcc
v_cndmask_b32 v{vVs}, 0, v{T+3}, vcc
v_cmp_gt_u32 vcc, 32, v{vLane}
''')
    k('s_nop 0')
    vm.wait('q')
    k(f'v_cndmask_b32 v{Q2}, 0, v{Q2}, vcc')
    vm.wait('c0')
    k('s_waitcnt lgkmcnt(0)\ns_barrier')
    def rdK(b, off):
        k(f'ds_read_b128 v[{KA[b]}:{KA[b]+3}], v{vK1a} offset:{off*1024}')
        k(f'ds_read_b32 v{KB[b]}, v{vK2a} offset:{off*128}')
    def rdV(off):
        k(f'ds_read_b128 v[{VA[0]}:{VA[0]+3}], v{vVa} offset:{off*1152}')
        k(f'ds_read_b128 v[{VA[1]}:{VA[1]+3}], v{vVa} offset:{off*1152+576}')
    def A(b):
        s = S[b]
        k(f'v_mfma_f32_32x32x16_bf16 v[{s}:{s+15}], v[{KA[b]}:{KA[b]+3}], v[{Q1}:{Q1+3}], 0')
        k(f'v_mfma_f32_32x32x16_bf16 v[{s}:{s+15}], v[{KB[b]}:{KB[b]+3}], v[{Q2}:{Q2+3}], v[{s}:{s+15}]')
    def B(b):
        s = S[b]
        for i in range(16): k(f'v_exp_f32 v{s+i}, v{s+i}')
        for i in range(8): k(f'v_cvt_pk_bf16_f32 v{P+i}, v{s+2*i}, v{s+2*i+1}')
    def C():
        k(f'v_mfma_f32_32x32x16_bf16 v[{O}:{O+15}], v[{VA[0]}:{VA[0]+3}], v[{P}:{P+3}], v[{O}:{O+15}]')
        k(f'v_mfma_f32_32x32x16_bf16 v[{O}:{O+15}], v[{VA[1]}:{VA[1]+3}], v[{P+4}:{P+7}], v[{O}:{O+15}]')
    rdK(0, 0); rdK(1, 1); rdV(0)
    k('s_waitcnt lgkmcnt(4)')
    A(0)
    k('s_nop 7')
    def body():
        k('s_waitcnt lgkmcnt(2)')
        A(1); rdK(0, 2); B(0)
        k('s_waitcnt lgkmcnt(2)')
        C(); rdV(1)
        k('s_waitcnt lgkmcnt(2)')
        A(0); rdK(1, 3); B(1)
        k('s_waitcnt lgkmcnt(2)')
        C(); rdV(2)
        k(f'''
v_add_u32 v{vK1a}, 2048, v{vK1a}
v_add_u32 v{vK2a}, 256, v{vK2a}
v_add_u32 v{vVa}, v{vVs}, v{vVa}
s_sub_u32 s{sCnt}, s{sCnt}, 1
s_cmp_lg_u32 s{sCnt}, 0
''')
    k(f's_mov_b32 s{sCnt}, 7')
    k.label('L_att1')
    body()
    k('s_cbranch_scc1 L_att1')
    k('s_waitcnt vmcnt(0)\ns_barrier')
    k(f's_mov_b32 s{sCnt}, 25')
    k.label('L_att2')
    body()
    k('s_cbranch_scc1 L_att2')
    k(f'''
s_waitcnt lgkmcnt(0)
s_nop 15
v_mov_b32 v{T}, v{O+10}
v_mov_b32 v{T+1}, v{O+10}
s_nop 1
v_permlane32_swap_b32 v{T}, v{T+1}
v_rcp_f32 v{T}, v{T}
s_lshl_b32 s{sTmp}, s{sQb}, 8
s_lshl_b32 s{sTmp+1}, s{sW}, 5
s_add_u32 s{sTmp}, s{sTmp}, s{sTmp+1}
s_mul_i32 s{sTmp}, s{sTmp}, 1152
s_mul_i32 s{sTmp+1}, s{sHead}, 36
s_add_u32 s{sTmp}, s{sTmp}, s{sTmp+1}
v_and_b32 v{T+2}, 31, v{vLane}
v_mul_u32_u24 v{T+2}, 1152, v{T+2}
v_lshrrev_b32 v{T+3}, 5, v{vLane}
v_lshl_add_u32 v{T+2}, v{T+3}, 3, v{T+2}
''')
    for i in range(10): k(f'v_mul_f32 v{O+i}, v{O+i}, v{T}')
    for i in range(5): k(f'v_cvt_pk_bf16_f32 v{P+i}, v{O+2*i}, v{O+2*i+1}')
    k(f'''
buffer_store_dwordx2 v[{P}:{P+1}], v{T+2}, s[28:31], s{sTmp} offen
buffer_store_dwordx2 v[{P+2}:{P+3}], v{T+2}, s[28:31], s{sTmp} offen offset:16
s_mov_b32 s{sTmp+2}, -1
s_mov_b32 s{sTmp+3}, 0
s_mov_b64 exec, s[{sTmp+2}:{sTmp+3}]
buffer_store_dword v{P+4}, v{T+2}, s[28:31], s{sTmp} offen offset:32
''')
    k.label(End)
    k('s_endpgm')
    return k
```

```python
from common import *

def gen_lngemm(stage):
    name = 'qkv_kernel' if stage == 1 else 'win_kernel'
    k = Kernel(name)
    vm = VM(k)
    NWG = 192 if stage == 1 else 256
    NPASS = 1 if stage == 1 else 2
    ROWB = 3456 if stage == 1 else 9216
    NBUF = 4
    NS = 9 * NPASS
    STG = 18432
    vLane, vTl, vG = 1, 2, 3
    vX0, vX1 = 4, 5
    vDma = 6
    vTrA, vTrB, vTrC = 11, 12, 13
    vC = 14
    vE = 15
    XB = 16
    AC = 160
    T = 232
    def X(tt, ks): b = XB + (tt * 18 + ks) * 4; return f'v[{b}:{b+3}]'
    def ACC(jt, tt): b = AC + (jt * 2 + tt) * 4; return f'v[{b}:{b+3}]'
    def F(st, jt): b = st * 36 + jt * 4; return b
    sW, sMt, sNt, sT0 = 40, 41, 42, 43
    sM0 = 44
    sWoff = 49
    sTmp = 50
    sOri = 52
    sPass = 53
    sEo = 54
    sScale = 55
    End = f'L_end_{name}'
    k(f's_cmp_ge_u32 s2, {NWG}\ns_cbranch_scc1 {End}')
    load_ptrs(k)
    k(f'''
v_and_b32 v{vLane}, 63, v0
v_lshrrev_b32 v{T}, 6, v0
v_and_b32 v{vTl}, 15, v0
v_readfirstlane_b32 s{sW}, v{T}
v_lshrrev_b32 v{vG}, 4, v{vLane}
''')
    if stage == 1:
        k(f'''
s_mov_b32 s{sTmp}, 0x15555556
s_mul_hi_u32 s{sMt}, s2, s{sTmp}
s_mul_i32 s{sTmp}, s{sMt}, 12
s_sub_u32 s{sNt}, s2, s{sTmp}
''')
    else:
        k(f'''
s_lshr_b32 s{sMt}, s2, 4
s_and_b32 s{sNt}, s2, 15
''')
    k(f'''
s_lshl_b32 s{sT0}, s{sMt}, 7
s_lshl_b32 s{sTmp}, s{sW}, 5
s_add_u32 s{sT0}, s{sT0}, s{sTmp}
s_waitcnt lgkmcnt(0)
''')
    if stage == 1:
        srd_in(k, 24, 0, SZ_X); srd_in(k, 28, 1, 576 * 1728 * 2)
        srd_ws(k, 32, WS_Q, 9 * MB)
    else:
        srd_ws(k, 24, WS_H, SZ_X); srd_in(k, 28, 4, 576 * 4608 * 2)
        srd_ws(k, 32, WS_Z1, 21 * MB)
    k(f'''
v_add_u32 v{T}, s{sT0}, v{vTl}
s_movk_i32 s{sTmp}, 1152
v_mul_lo_u32 v{T}, v{T}, s{sTmp}
v_lshlrev_b32 v{T+1}, 4, v{vG}
v_add_u32 v{vX0}, v{T}, v{T+1}
v_add_u32 v{vX1}, {16*1152}, v{vX0}
''')
    for tt in range(2):
        for ks in range(18):
            k(f'buffer_load_dwordx4 {X(tt,ks)}, v{vX0+tt}, s[24:27], 0 offen offset:{64*ks}')
            vm.issue('x')
    for j in range(5):
        if j < 4:
            k(f's_add_u32 s{sM0+j}, s{sW}, {4*j}')
        else:
            k(f's_add_u32 s{sM0+j}, s{sW}, 16\ns_add_u32 s{sTmp}, s{sW}, 12\ns_cmp_lt_u32 s{sW}, 2\ns_cselect_b32 s{sM0+j}, s{sM0+j}, s{sTmp}')
        k(f'''
s_lshl_b32 s{sTmp}, s{sM0+j}, 6
v_add_u32 v{T}, s{sTmp}, v{vLane}
v_mul_u32_u24 v{T+1}, 3641, v{T}
v_lshrrev_b32 v{T+1}, 16, v{T+1}
v_mul_u32_u24 v{T+2}, 18, v{T+1}
v_sub_u32 v{T+2}, v{T}, v{T+2}
v_and_b32 v{T+3}, 8, v{T+1}
v_xor_b32 v{T+3}, v{T+3}, v{T+2}
v_cmp_gt_u32 vcc, 16, v{T+2}
s_movk_i32 s{sTmp}, {ROWB}
v_mul_lo_u32 v{T+1}, v{T+1}, s{sTmp}
v_cndmask_b32 v{T+2}, v{T+2}, v{T+3}, vcc
v_lshlrev_b32 v{T+2}, 4, v{T+2}
v_add_u32 v{vDma+j}, v{T+1}, v{T+2}
s_lshl_b32 s{sM0+j}, s{sM0+j}, 10
''')
    k(f's_mul_i32 s{sWoff}, s{sNt}, {288*NPASS}')
    def dma(S):
        buf = S % NBUF
        for j in range(5):
            k(f's_add_u32 m0, s{sM0+j}, {buf*STG}')
            k(f's_add_u32 s{sTmp+1}, s{sWoff}, {(S%9)*64*ROWB + (S//9)*288}')
            k(f'buffer_load_dwordx4 v{vDma+j}, s[28:31], s{sTmp+1} offen lds')
            vm.issue(f'w{S}')
    dma(0); dma(1); dma(2)
    k(f'''
v_lshrrev_b32 v{T}, 2, v{vTl}
v_lshl_add_u32 v{T}, v{vG}, 3, v{T}
v_mul_u32_u24 v{T}, 288, v{T}
v_and_b32 v{T+1}, 3, v{vLane}
v_lshl_add_u32 v{vTrC}, v{T+1}, 3, v{T}
v_and_b32 v{T+1}, 1, v{vG}
v_lshlrev_b32 v{T+1}, 7, v{T+1}
v_add_u32 v{vTrA}, v{vTrC}, v{T+1}
v_sub_u32 v{vTrB}, v{vTrC}, v{T+1}
v_add_u32 v0, {2*STG}, v{vTrA}
v_add_u32 v4, {2*STG}, v{vTrB}
v_add_u32 v5, {2*STG}, v{vTrC}
''')
    ON = T + 4
    for i in range(4): k(f'v_mov_b32 v{ON+i}, 0x3f803f80')
    k('s_nop 0')
    vm.wait('x')
    S1 = [AC, AC + 4]; S2 = [AC + 8, AC + 12]
    for ks in range(18):
        for tt in range(2):
            c1 = '0' if ks == 0 else f'v[{S1[tt]}:{S1[tt]+3}]'
            c2 = '0' if ks == 0 else f'v[{S2[tt]}:{S2[tt]+3}]'
            k(f'v_mfma_f32_16x16x32_bf16 v[{S1[tt]}:{S1[tt]+3}], v[{ON}:{ON+3}], {X(tt,ks)}, {c1}')
            k(f'v_mfma_f32_16x16x32_bf16 v[{S2[tt]}:{S2[tt]+3}], {X(tt,ks)}, {X(tt,ks)}, {c2}')
    k(f'''
v_and_b32 v{T}, 3, v{vTl}
v_cmp_eq_u32 s[56:57], 1, v{T}
v_cmp_eq_u32 s[58:59], 2, v{T}
v_cmp_eq_u32 s[60:61], 3, v{T}
v_lshrrev_b32 v{T}, 2, v{vTl}
v_cmp_eq_u32 s[62:63], v{T}, v{vG}
s_nop 4
''')
    RS = [T + 8, T + 10]
    NB = [T + 12, T + 14]
    for tt in range(2):
        d = S2[tt]
        k(f'''
v_cndmask_b32 v{T}, v{d}, v{d+1}, s[56:57]
v_cndmask_b32 v{T}, v{T}, v{d+2}, s[58:59]
v_cndmask_b32 v{T}, v{T}, v{d+3}, s[60:61]
v_cndmask_b32 v{T}, 0, v{T}, s[62:63]
v_mov_b32 v{T+1}, v{T}
s_nop 1
v_permlane32_swap_b32 v{T}, v{T+1}
v_add_f32 v{T}, v{T}, v{T+1}
v_mov_b32 v{T+1}, v{T}
s_nop 1
v_permlane16_swap_b32 v{T}, v{T+1}
v_add_f32 v{T}, v{T}, v{T+1}
v_mul_f32 v{T+1}, {hexf(1.0/576)}, v{S1[tt]}
v_mul_f32 v{T}, {hexf(1.0/576)}, v{T}
v_fma_f32 v{T}, -v{T+1}, v{T+1}, v{T}
v_max_f32 v{T}, 0, v{T}
v_add_f32 v{T}, {hexf(1e-5)}, v{T}
v_rsq_f32 v{RS[tt]}, v{T}
s_nop 0
v_mov_b32 v{RS[tt]+1}, v{RS[tt]}
v_mul_f32 v{NB[tt]}, v{T+1}, v{RS[tt]}
v_sub_f32 v{NB[tt]}, 0, v{NB[tt]}
v_mov_b32 v{NB[tt]+1}, v{NB[tt]}
''')
    for tt in range(2):
        for i in range(72):
            r = XB + tt * 72 + i
            t = T + 16 + 2 * (i % 4)
            k(f'''
v_lshlrev_b32 v{t}, 16, v{r}
v_and_b32 v{t+1}, 0xffff0000, v{r}
v_pk_fma_f32 v[{t}:{t+1}], v[{t}:{t+1}], v[{RS[tt]}:{RS[tt]+1}], v[{NB[tt]}:{NB[tt]+1}]
v_cvt_pk_bf16_f32 v{r}, v{t}, v{t+1}
''')
    def trreads(st, buf, ks2):
        out = []
        for jt in range(9):
            va = vTrA if jt < 4 else (vTrB if jt < 8 else vTrC)
            if buf >= 2: va = 0 if jt < 4 else (4 if jt < 8 else 5)
            for h in range(2):
                off = (buf % 2) * STG + (32 * ks2 + 4 * h) * 288 + jt * 32
                b = F(st, jt) + 2 * h
                out.append(f'ds_read_b64_tr_b16 a[{b}:{b+1}], v{va} offset:{off}')
        return out
    def kstep(ori, ks, st, reads, first):
        ms = []
        for jt in range(9):
            for tt in range(2):
                b = F(st, jt)
                c = '0' if first else ACC(jt, tt)
                if ori == 0: ms.append(f'v_mfma_f32_16x16x32_bf16 {ACC(jt,tt)}, a[{b}:{b+3}], {X(tt,ks)}, {c}')
                else: ms.append(f'v_mfma_f32_16x16x32_bf16 {ACC(jt,tt)}, {X(tt,ks)}, a[{b}:{b+3}], {c}')
        ri = 0
        for i, m in enumerate(ms):
            k(m)
            for _ in range(2):
                if ri < len(reads): k(reads[ri]); ri += 1
    k(f's_cmp_ge_u32 s{sNt}, 8')
    k(f's_cbranch_scc1 L_ori1_{name}')
    q0 = list(vm.q)
    for ori in range(2):
        vm.q = list(q0)
        if ori == 1: k.label(f'L_ori1_{name}')
        vm.wait('w0'); k('s_barrier')
        for r in trreads(0, 0, 0): k(r)
        for S in range(NS):
            s9 = S % 9
            buf = S % NBUF
            k('s_waitcnt lgkmcnt(0)')
            kstep(ori, 2 * s9, 0, trreads(1, buf, 1), first=(s9 == 0))
            last = (S == NS - 1)
            if not last:
                vm.wait(f'w{S+1}'); k('s_barrier')
                if S + 3 < NS: dma(S + 3)
            k('s_waitcnt lgkmcnt(0)')
            kstep(ori, 2 * s9 + 1, 1, [] if last else trreads(0, (S + 1) % NBUF, 0), first=False)
            if s9 == 8:
                k('s_nop 7')
                k(f's_mov_b32 s{sPass}, {S//9}')
                if stage == 1: epi_qkv(k, ori, locals())
                else: epi_win(k, ori, locals())
        k(f's_branch {End}')
    k.label(End)
    k('s_endpgm')
    return k

def epi_qkv(k, ori, L):
    T, AC, vTl, vG, vE = L['T'], L['AC'], L['vTl'], L['vG'], L['vE']
    sNt, sMt, sW, sTmp, sEo, sScale = L['sNt'], L['sMt'], L['sW'], L['sTmp'], L['sEo'], L['sScale']
    c = (18 ** -0.5) * math.log2(math.e)
    if ori == 0:
        k(f'''
s_lshr_b32 s{sTmp}, s{sNt}, 2
s_mul_i32 s{sEo}, s{sTmp}, {WS_K}
s_cmp_eq_u32 s{sTmp}, 0
s_cselect_b32 s{sScale}, {hexf(c)}, 1.0
s_and_b32 s{sTmp}, s{sNt}, 3
s_mul_i32 s{sTmp}, s{sTmp}, {8*98304}
s_add_u32 s{sEo}, s{sEo}, s{sTmp}
s_lshl_b32 s{sTmp}, s{sMt}, 2
s_add_u32 s{sTmp}, s{sTmp}, s{sW}
s_mul_i32 s{sTmp}, s{sTmp}, 1536
s_add_u32 s{sEo}, s{sEo}, s{sTmp}
v_lshlrev_b32 v{vE}, 4, v{vTl}
v_lshlrev_b32 v{T+23}, 2, v{vG}
s_mov_b32 s{sTmp}, 98304
''')
        for jt in range(9):
            for p in range(2):
                t = T + 8 * p
                k(f'''
v_add_u32 v{t}, {16*jt+2*p}, v{T+23}
v_mul_u32_u24 v{t+1}, 57, v{t}
v_lshrrev_b32 v{t+1}, 10, v{t+1}
v_mul_u32_u24 v{t+2}, 18, v{t+1}
v_sub_u32 v{t}, v{t}, v{t+2}
v_mul_lo_u32 v{t+1}, v{t+1}, s{sTmp}
v_lshrrev_b32 v{t+2}, 3, v{t}
v_lshl_add_u32 v{t+1}, v{t+2}, 9, v{t+1}
v_and_b32 v{t}, 7, v{t}
v_lshl_add_u32 v{t+1}, v{t}, 1, v{t+1}
v_add_u32 v{t+1}, v{t+1}, v{vE}
''')
                for tt in range(2):
                    a = AC + (jt * 2 + tt) * 4 + 2 * p
                    k(f'''
v_mul_f32 v{t+3}, s{sScale}, v{a}
v_mul_f32 v{t+4}, s{sScale}, v{a+1}
v_cvt_pk_bf16_f32 v{t+5+tt}, v{t+3}, v{t+4}
buffer_store_dword v{t+5+tt}, v{t+1}, s[32:35], s{sEo} offen offset:{256*tt}
''')
    else:
        k(f'''
s_sub_u32 s{sTmp}, s{sNt}, 8
s_mul_i32 s{sEo}, s{sTmp}, {8*73728}
s_add_u32 s{sEo}, s{sEo}, {WS_V}
s_lshl_b32 s{sTmp}, s{sMt}, 2
s_add_u32 s{sTmp}, s{sTmp}, s{sW}
s_mul_i32 s{sTmp}, s{sTmp}, 1152
s_add_u32 s{sEo}, s{sEo}, s{sTmp}
v_and_b32 v{T}, 1, v{vG}
v_mul_u32_u24 v{T}, 288, v{T}
v_lshrrev_b32 v{T+1}, 1, v{vG}
v_lshl_add_u32 v{vE}, v{T+1}, 3, v{T}
s_mov_b32 s{sTmp}, 73728
''')
        for jt in range(9):
            t = T + 8 * (jt % 2)
            k(f'''
v_add_u32 v{t}, {16*jt}, v{vTl}
v_mul_u32_u24 v{t+1}, 57, v{t}
v_lshrrev_b32 v{t+1}, 10, v{t+1}
v_mul_u32_u24 v{t+2}, 18, v{t+1}
v_sub_u32 v{t}, v{t}, v{t+2}
v_mul_lo_u32 v{t+1}, v{t+1}, s{sTmp}
v_lshl_add_u32 v{t+1}, v{t}, 4, v{t+1}
v_add_u32 v{t+1}, v{t+1}, v{vE}
''')
            for tt in range(2):
                a = AC + (jt * 2 + tt) * 4
                d = t + 4 + 2 * tt
                k(f'''
v_cvt_pk_bf16_f32 v{d}, v{a}, v{a+1}
v_cvt_pk_bf16_f32 v{d+1}, v{a+2}, v{a+3}
buffer_store_dwordx2 v[{d}:{d+1}], v{t+1}, s[32:35], s{sEo} offen offset:{576*tt}
''')

def gelu(k, a, t, vC):
    c1 = -2.0 * math.log2(math.e) * math.sqrt(2.0 / math.pi)
    c2 = c1 * 0.044715
    return [f'v_mul_f32 v{t}, v{a}, v{a}',
            f'v_fmaak_f32 v{t}, v{t}, v{vC}, {hexf(c1)}',
            f'v_mul_f32 v{t}, v{t}, v{a}',
            f'v_exp_f32 v{t}, v{t}',
            f'v_add_f32 v{t}, 1.0, v{t}',
            f'v_rcp_f32 v{t}, v{t}',
            f'v_mul_f32 v{a}, v{a}, v{t}']

def interleave(seqs):
    out = []
    n = max(len(s) for s in seqs)
    for i in range(n):
        for s in seqs:
            if i < len(s): out.append(s[i])
    return out

def epi_win(k, ori, L):
    T, AC, vTl, vG, vE, vC = L['T'], L['AC'], L['vTl'], L['vG'], L['vE'], L['vC']
    sNt, sMt, sW, sTmp, sEo, sPass, sT0 = L['sNt'], L['sMt'], L['sW'], L['sTmp'], L['sEo'], L['sPass'], L['sT0']
    c1 = -2.0 * math.log2(math.e) * math.sqrt(2.0 / math.pi)
    c2 = c1 * 0.044715
    k(f'v_mov_b32 v{vC}, {hexf(c2)}')
    if ori == 0:
        k(f'''
s_lshl_b32 s{sTmp}, s{sNt}, 1
s_add_u32 s{sTmp}, s{sTmp}, s{sPass}
s_mul_i32 s{sTmp}, s{sTmp}, 288
s_mul_i32 s{sEo}, s{sT0}, 4608
s_add_u32 s{sEo}, s{sEo}, s{sTmp}
s_add_u32 s{sTmp}, s{sEo}, {16*4608}
v_mul_u32_u24 v{vE}, 4608, v{vTl}
v_lshl_add_u32 v{vE}, v{vG}, 3, v{vE}
''')
        for jt in range(9):
            for tt in range(2):
                a = AC + (jt * 2 + tt) * 4
                for x in interleave([gelu(k, a + r, T + r, vC) for r in range(4)]): k(x)
                d = T + 4 + 2 * tt
                k(f'''
v_cvt_pk_bf16_f32 v{d}, v{a}, v{a+1}
v_cvt_pk_bf16_f32 v{d+1}, v{a+2}, v{a+3}
buffer_store_dwordx2 v[{d}:{d+1}], v{vE}, s[32:35], s{sEo if tt == 0 else sTmp} offen offset:{32*jt}
''')
    else:
        k(f'''
s_sub_u32 s{sTmp}, s{sNt}, 8
s_lshl_b32 s{sTmp}, s{sTmp}, 1
s_add_u32 s{sTmp}, s{sTmp}, s{sPass}
s_mul_i32 s{sEo}, s{sTmp}, {144*4096}
s_lshl_b32 s{sTmp+1}, s{sT0}, 1
s_add_u32 s{sEo}, s{sEo}, s{sTmp+1}
s_add_u32 s{sEo}, s{sEo}, {WS_Z2-WS_Z1}
v_lshlrev_b32 v{vE}, 12, v{vTl}
v_lshl_add_u32 v{vE}, v{vG}, 3, v{vE}
''')
        SS = T + 8
        for jt in range(9):
            for tt in range(2):
                a = AC + (jt * 2 + tt) * 4
                for x in interleave([gelu(k, a + r, T + r, vC) for r in range(4)]): k(x)
                d = T + 4 + 2 * tt
                k(f'''
v_cvt_pk_bf16_f32 v{d}, v{a}, v{a+1}
v_cvt_pk_bf16_f32 v{d+1}, v{a+2}, v{a+3}
buffer_store_dwordx2 v[{d}:{d+1}], v{vE}, s[32:35], s{sEo} offen offset:{32*tt}
''')
                for r in range(4):
                    s1 = SS + tt * 4 + r; s2 = SS + 8 + tt * 4 + r
                    if jt == 0:
                        k(f'v_mov_b32 v{s1}, v{a+r}\nv_mul_f32 v{s2}, v{a+r}, v{a+r}')
                    else:
                        k(f'v_add_f32 v{s1}, v{s1}, v{a+r}\nv_fmac_f32 v{s2}, v{a+r}, v{a+r}')
            k(f's_add_u32 s{sEo}, s{sEo}, {16*4096}')
        for sh in (1, 2, 4, 8):
            for i in range(16):
                k(f'v_add_f32_dpp v{AC+i}, v{SS+i}, v{SS+i} row_ror:{sh} row_mask:0xf bank_mask:0xf')
            for i in range(16):
                k(f'v_mov_b32 v{SS+i}, v{AC+i}')
        k(f'''
s_lshl_b32 s{sEo}, s{sT0}, 7
s_lshl_b32 s{sTmp}, s{sTmp}, 3
s_add_u32 s{sEo}, s{sEo}, s{sTmp}
s_add_u32 s{sEo}, s{sEo}, {WS_ST-WS_Z1}
v_lshlrev_b32 v{vE}, 9, v{vG}
s_mov_b32 s{sTmp}, 0x00010001
s_mov_b32 s{sTmp+1}, 0x00010001
s_mov_b64 exec, s[{sTmp}:{sTmp+1}]
''')
        for tt in range(2):
            for r in range(4):
                d = AC + 16 + 2 * (tt * 4 + r)
                k(f'v_mov_b32 v{d}, v{SS+tt*4+r}\nv_mov_b32 v{d+1}, v{SS+8+tt*4+r}')
                k(f'buffer_store_dwordx2 v[{d}:{d+1}], v{vE}, s[32:35], s{sEo} offen offset:{(16*tt+r)*128}')
        k('s_mov_b64 exec, -1')
```

```python
from common import *

def gen_norm():
    name = 'norm_kernel'
    k = Kernel(name)
    vm = VM(k)
    End = f'L_end_{name}'
    sSt, sFt, sTmp = 40, 41, 44
    vO = 1
    D = 4
    P = 40
    R = 72
    T = 88
    k(f's_cmp_ge_u32 s2, 256\ns_cbranch_scc1 {End}')
    load_ptrs(k)
    k(f'''
s_and_b32 s{sSt}, s2, 15
s_lshr_b32 s{sFt}, s2, 4
v_and_b32 v{T}, 15, v0
v_lshrrev_b32 v{T+1}, 4, v0
v_lshlrev_b32 v{vO}, 12, v{T+1}
v_lshl_add_u32 v{vO}, v{T}, 4, v{vO}
v_and_b32 v{T+2}, 127, v0
v_lshlrev_b32 v{T+2}, 7, v{T+2}
s_waitcnt lgkmcnt(0)
''')
    srd_ws(k, 24, WS_Z2, SZ_Z); srd_ws(k, 28, WS_ST, SZ_ST)
    k(f'''
s_lshl_b32 s{sTmp}, s{sSt}, 14
s_mul_i32 s{sTmp+1}, s{sFt}, {144*4096}
s_lshl_b32 s{sTmp+2}, s{sSt}, 8
s_add_u32 s{sTmp+1}, s{sTmp+1}, s{sTmp+2}
''')
    for i in range(8):
        k(f'buffer_load_dwordx4 v[{P+4*i}:{P+4*i+3}], v{T+2}, s[28:31], s{sTmp} offen offset:{16*i}')
        vm.issue('p')
    for j in range(9):
        k(f's_add_u32 s{sTmp+4+j}, s{sTmp+1}, {j*16*4096}')
        k(f'buffer_load_dwordx4 v[{D+4*j}:{D+4*j+3}], v{vO}, s[24:27], s{sTmp+4+j} offen')
        vm.issue(f'd{j}')
    vm.wait('p')
    for i in range(1, 16):
        k(f'v_add_f32 v{P}, v{P}, v{P+2*i}\nv_add_f32 v{P+1}, v{P+1}, v{P+2*i+1}')
    k(f'''
v_mul_f32 v{P}, {hexf(1.0/2304)}, v{P}
v_mul_f32 v{P+1}, {hexf(1.0/2304)}, v{P+1}
v_fma_f32 v{P+1}, -v{P}, v{P}, v{P+1}
v_max_f32 v{P+1}, 0, v{P+1}
v_add_f32 v{P+1}, {hexf(1e-5)}, v{P+1}
v_rsq_f32 v{P+2}, v{P+1}
v_and_b32 v{T+3}, 127, v0
v_lshlrev_b32 v{T+3}, 2, v{T+3}
v_mul_f32 v{P+3}, v{P}, v{P+2}
v_sub_f32 v{P+3}, 0, v{P+3}
ds_write_b32 v{T+3}, v{P+2}
ds_write_b32 v{T+3}, v{P+3} offset:512
v_lshlrev_b32 v{T+4}, 5, v{T}
s_waitcnt lgkmcnt(0)
s_barrier
ds_read_b128 v[{R}:{R+3}], v{T+4}
ds_read_b128 v[{R+4}:{R+7}], v{T+4} offset:16
ds_read_b128 v[{R+8}:{R+11}], v{T+4} offset:512
ds_read_b128 v[{R+12}:{R+15}], v{T+4} offset:528
s_waitcnt lgkmcnt(0)
''')
    for j in range(9):
        vm.wait(f'd{j}')
        for i in range(4):
            r = D + 4 * j + i
            t = T + 8 + 2 * i
            k(f'''
v_lshlrev_b32 v{t}, 16, v{r}
v_and_b32 v{t+1}, 0xffff0000, v{r}
v_pk_fma_f32 v[{t}:{t+1}], v[{t}:{t+1}], v[{R+2*i}:{R+2*i+1}], v[{R+8+2*i}:{R+8+2*i+1}]
v_cvt_pk_bf16_f32 v{r}, v{t}, v{t+1}
''')
        k(f'buffer_store_dwordx4 v[{D+4*j}:{D+4*j+3}], v{vO}, s[24:27], s{sTmp+4+j} offen')
    k.label(End)
    k('s_endpgm')
    return k
```

```python
from common import *

def gen_skgemm(stage):
    name = 'wo_kernel' if stage == 3 else 'wout_kernel'
    k = Kernel(name)
    vm = VM(k)
    End = f'L_end_{name}'
    K = 576 if stage == 3 else 2304
    NSPLIT = 3 if stage == 3 else 4
    NKS = K // 32 // NSPLIT
    AROW = K * 2
    NB = 3
    STG = 9216
    WREG = NB * STG
    NRED = (18 + NSPLIT - 1) // NSPLIT
    vLane, vTl, vG = 1, 2, 3
    vA0, vA1 = 4, 5
    vTrA, vTrB, vTrC = 6, 7, 8
    vL16 = 9
    vDma = 10
    vO = 19
    AF = 20
    AC = 44
    RES = 124
    T = 140
    def ACC(jt, tt): b = AC + (jt * 2 + tt) * 4; return f'v[{b}:{b+3}]'
    def F(st, jt): return st * 36 + jt * 4
    def AFr(ks, tt): b = AF + (ks % NB) * 8 + tt * 4; return f'v[{b}:{b+3}]'
    sW, sNt, sT0, sTmp, sLb, sWo, sAo = 40, 41, 42, 44, 46, 47, 48
    sRo = 50
    sRl = 58
    k(f's_cmp_ge_u32 s2, 256\ns_cbranch_scc1 {End}')
    load_ptrs(k)
    k(f'''
v_and_b32 v{vLane}, 63, v0
v_lshrrev_b32 v{T}, 6, v0
v_and_b32 v{vTl}, 15, v0
v_readfirstlane_b32 s{sW}, v{T}
v_lshrrev_b32 v{vG}, 4, v{vLane}
v_lshlrev_b32 v{vL16}, 4, v{vLane}
s_and_b32 s{sNt}, s2, 3
s_lshr_b32 s{sT0}, s2, 2
s_lshl_b32 s{sT0}, s{sT0}, 5
s_mul_i32 s{sLb}, s{sW}, {WREG}
s_waitcnt lgkmcnt(0)
''')
    if stage == 3:
        srd_ws(k, 24, WS_O, SZ_X); srd_in(k, 28, 2, 576 * 576 * 2); srd_in(k, 32, 0, SZ_X); srd_ws(k, 36, WS_H, SZ_X)
    else:
        srd_ws(k, 24, WS_U, SZ_Z); srd_in(k, 28, 7, 2304 * 576 * 2); srd_ws(k, 32, WS_H, SZ_X); srd_out(k, 36)
    k(f'''
v_add_u32 v{T}, s{sT0}, v{vTl}
s_movk_i32 s{sTmp}, {AROW}
v_mul_lo_u32 v{T}, v{T}, s{sTmp}
v_lshl_add_u32 v{vA0}, v{vG}, 4, v{T}
v_add_u32 v{vA1}, {16*AROW}, v{vA0}
s_mul_i32 s{sAo}, s{sW}, {NKS*64}
s_mul_i32 s{sWo}, s{sW}, {NKS*32*1152}
s_mul_i32 s{sTmp}, s{sNt}, 288
s_add_u32 s{sWo}, s{sWo}, s{sTmp}
''')
    for j in range(9):
        k(f'''
v_add_u32 v{T}, {64*j}, v{vLane}
v_mul_u32_u24 v{T+1}, 3641, v{T}
v_lshrrev_b32 v{T+1}, 16, v{T+1}
v_mul_u32_u24 v{T+2}, 18, v{T+1}
v_sub_u32 v{T+2}, v{T}, v{T+2}
v_and_b32 v{T+3}, 8, v{T+1}
v_xor_b32 v{T+3}, v{T+3}, v{T+2}
v_cmp_gt_u32 vcc, 16, v{T+2}
v_mul_u32_u24 v{T+1}, 1152, v{T+1}
s_nop 0
v_cndmask_b32 v{T+2}, v{T+2}, v{T+3}, vcc
v_lshl_add_u32 v{vDma+j}, v{T+2}, 4, v{T+1}
''')
    def loads(ks):
        buf = ks % NB
        k(f's_add_u32 s{sTmp+1}, s{sWo}, {ks*32*1152}')
        for j in range(9):
            k(f's_add_u32 m0, s{sLb}, {buf*STG + j*1024}')
            k('s_nop 0')
            k(f'buffer_load_dwordx4 v{vDma+j}, s[28:31], s{sTmp+1} offen lds')
            vm.issue(f'g{ks}')
        for tt in range(2):
            k(f'buffer_load_dwordx4 {AFr(ks,tt)}, v{vA0+tt}, s[24:27], s{sAo} offen offset:{64*ks}')
            vm.issue(f'g{ks}')
    for ks in range(min(NB, NKS)): loads(ks)
    k(f'''
v_lshrrev_b32 v{T}, 2, v{vTl}
v_lshl_add_u32 v{T}, v{vG}, 3, v{T}
v_mul_u32_u24 v{T}, 288, v{T}
v_and_b32 v{T+1}, 3, v{vLane}
v_lshl_add_u32 v{vTrC}, v{T+1}, 3, v{T}
v_add_u32 v{vTrC}, s{sLb}, v{vTrC}
v_and_b32 v{T+1}, 1, v{vG}
v_lshlrev_b32 v{T+1}, 7, v{T+1}
v_add_u32 v{vTrA}, v{vTrC}, v{T+1}
v_sub_u32 v{vTrB}, v{vTrC}, v{T+1}
''')
    k(f'''
v_mul_u32_u24 v{vO}, 1152, v{vTl}
v_lshl_add_u32 v{vO}, v{vG}, 3, v{vO}
s_mul_i32 s{sTmp}, s{sT0}, 1152
s_mul_i32 s{sTmp+1}, s{sNt}, 288
s_add_u32 s{sTmp}, s{sTmp}, s{sTmp+1}
''')
    for i in range(NRED):
        k(f'''
s_add_u32 s{sRl+i}, s{sW}, {NSPLIT*i}
s_min_u32 s{sRl+i}, s{sRl+i}, 17
s_and_b32 s{sTmp+1}, s{sRl+i}, 1
s_mul_i32 s{sTmp+1}, s{sTmp+1}, {16*1152}
s_add_u32 s{sRo+i}, s{sTmp}, s{sTmp+1}
s_lshr_b32 s{sTmp+1}, s{sRl+i}, 1
s_lshl_b32 s{sTmp+1}, s{sTmp+1}, 5
s_add_u32 s{sRo+i}, s{sRo+i}, s{sTmp+1}
s_lshl_b32 s{sRl+i}, s{sRl+i}, 10
''')
    def trreads(st, buf):
        out = []
        for jt in range(9):
            va = vTrA if jt < 4 else (vTrB if jt < 8 else vTrC)
            for h in range(2):
                off = buf * STG + (4 * h) * 288 + jt * 32
                b = F(st, jt) + 2 * h
                out.append(f'ds_read_b64_tr_b16 a[{b}:{b+1}], v{va} offset:{off}')
        return out
    vm.wait('g0')
    for r in trreads(0, 0): k(r)
    for ks in range(NKS):
        st = ks % 2
        k('s_waitcnt lgkmcnt(0)')
        reads = []
        if ks + 1 < NKS:
            vm.wait(f'g{ks+1}')
            reads = trreads(1 - st, (ks + 1) % NB)
        ms = []
        for jt in range(9):
            for tt in range(2):
                b = F(st, jt)
                c = '0' if ks == 0 else ACC(jt, tt)
                ms.append(f'v_mfma_f32_16x16x32_bf16 {ACC(jt,tt)}, a[{b}:{b+3}], {AFr(ks,tt)}, {c}')
        ri = 0
        for i, m in enumerate(ms):
            k(m)
            for _ in range(2):
                if ri < len(reads): k(reads[ri]); ri += 1
        if ks + NB < NKS:
            loads(ks + NB)
        if ks == NKS - 2 or NKS == 1:
            for i in range(NRED):
                k(f'buffer_load_dwordx2 v[{RES+2*i}:{RES+2*i+1}], v{vO}, s[32:35], s{sRo+i} offen')
                vm.issue('res')
    k('s_nop 7')
    k(f'v_add_u32 v{T}, s{sLb}, v{vL16}')
    for t in range(18):
        k(f'ds_write_b128 v{T}, v[{AC+4*t}:{AC+4*t+3}] offset:{1024*t}')
    k('s_waitcnt lgkmcnt(0)\ns_barrier')
    for i in range(NRED):
        k(f'v_add_u32 v{T+i}, s{sRl+i}, v{vL16}')
        for w in range(NSPLIT):
            b = AC + (i * NSPLIT + w) * 4
            off = w * WREG
            if off < 65536:
                k(f'ds_read_b128 v[{b}:{b+3}], v{T+i} offset:{off}')
            else:
                k(f'v_add_u32 v{T+8}, {off}, v{T+i}')
                k(f'ds_read_b128 v[{b}:{b+3}], v{T+8}')
    vm.wait('res')
    k('s_waitcnt lgkmcnt(0)')
    for i in range(NRED):
        b = AC + (i * NSPLIT) * 4
        for w in range(1, NSPLIT):
            for r in range(4): k(f'v_add_f32 v{b+r}, v{b+r}, v{b+4*w+r}')
        k(f'''
v_lshlrev_b32 v{T+10}, 16, v{RES+2*i}
v_and_b32 v{T+11}, 0xffff0000, v{RES+2*i}
v_lshlrev_b32 v{T+12}, 16, v{RES+2*i+1}
v_and_b32 v{T+13}, 0xffff0000, v{RES+2*i+1}
v_add_f32 v{b}, v{b}, v{T+10}
v_add_f32 v{b+1}, v{b+1}, v{T+11}
v_add_f32 v{b+2}, v{b+2}, v{T+12}
v_add_f32 v{b+3}, v{b+3}, v{T+13}
v_cvt_pk_bf16_f32 v{RES+2*i}, v{b}, v{b+1}
v_cvt_pk_bf16_f32 v{RES+2*i+1}, v{b+2}, v{b+3}
buffer_store_dwordx2 v[{RES+2*i}:{RES+2*i+1}], v{vO}, s[36:39], s{sRo+i} offen
''')
    k.label(End)
    k('s_endpgm')
    return k, NSPLIT * 64, NSPLIT * WREG
```

```python
from common import *

WSP_LDS = 8 * 18432

def gen_wsp():
    name = 'wsp_kernel'
    k = Kernel(name)
    vm = VM(k)
    End = f'L_end_{name}'
    NBUF = 8; STG = 18432; NST = 32; PD = 7
    vLane, vTl, vG = 1, 2, 3
    vB0, vB1 = 4, 5
    vDma = 6
    vRd = 12
    vE = 16
    vBias = 17
    BR = 20
    AC = 148
    T = 220
    Z1 = BR
    def ACC(jt, tt): b = AC + (jt * 2 + tt) * 4; return f'v[{b}:{b+3}]'
    def F(st, jt): return st * 36 + jt * 4
    def Bf(S, ks2, tt): b = BR + (S % NBUF) * 16 + (ks2 * 2 + tt) * 4; return f'v[{b}:{b+3}]'
    sW, sFt, sTt, sT0, sTmp, sM0, sKo, sCnt, sEo, sKr = 40, 41, 42, 43, 44, 48, 49, 50, 51, 53
    k(f's_cmp_ge_u32 s2, 256\ns_cbranch_scc1 {End}')
    load_ptrs(k)
    k(f'''
v_and_b32 v{vLane}, 63, v0
v_lshrrev_b32 v{T}, 6, v0
v_and_b32 v{vTl}, 15, v0
v_readfirstlane_b32 s{sW}, v{T}
v_lshrrev_b32 v{vG}, 4, v{vLane}
s_and_b32 s{sTmp}, s2, 7
s_lshr_b32 s{sTmp+1}, s2, 3
s_and_b32 s{sFt}, s{sTmp}, 3
s_lshl_b32 s{sFt}, s{sFt}, 2
s_and_b32 s{sTmp+2}, s{sTmp+1}, 3
s_add_u32 s{sFt}, s{sFt}, s{sTmp+2}
s_lshr_b32 s{sTt}, s{sTmp}, 2
s_lshl_b32 s{sTt}, s{sTt}, 3
s_lshr_b32 s{sTmp+2}, s{sTmp+1}, 2
s_add_u32 s{sTt}, s{sTt}, s{sTmp+2}
s_lshl_b32 s{sT0}, s{sTt}, 7
s_lshl_b32 s{sTmp}, s{sW}, 5
s_add_u32 s{sT0}, s{sT0}, s{sTmp}
s_mul_i32 s{sM0}, s{sW}, 4608
s_mov_b32 s{sKo}, 0
s_waitcnt lgkmcnt(0)
''')
    srd_ws(k, 24, WS_Z2, SZ_Z); srd_in(k, 28, 5, 2048 * 2048 * 2)
    srd_ws(k, 32, WS_Z1, SZ_Z); srd_ws(k, 36, WS_U, SZ_Z)
    k(f'''
v_add_u32 v{T}, s{sT0}, v{vTl}
v_lshlrev_b32 v{T}, 12, v{T}
v_lshl_add_u32 v{vB0}, v{vG}, 4, v{T}
v_add_u32 v{vB1}, {16*4096}, v{vB0}
s_mul_i32 s{sTmp}, s{sW}, 36
s_mul_i32 s{sTmp+1}, s{sFt}, 144
''')
    for j in range(5):
        k(f'''
v_lshrrev_b32 v{T}, 3, v{vLane}
v_add_u32 v{T}, {8*j}, v{T}
v_add_u32 v{T}, s{sTmp}, v{T}
v_lshrrev_b32 v{T+1}, 1, v{T}
v_xor_b32 v{T+1}, v{T+1}, v{vLane}
v_and_b32 v{T+1}, 7, v{T+1}
v_add_u32 v{T}, s{sTmp+1}, v{T}
v_lshlrev_b32 v{T}, 12, v{T}
v_lshl_add_u32 v{vDma+j}, v{T+1}, 4, v{T}
''')
    def loads(S, rel):
        buf = S % NBUF
        out = [f's_add_u32 s{sKr}, s{sKo}, {rel}']
        for j in range(5):
            out.append(f's_add_u32 m0, s{sM0}, {buf*STG + j*1024}')
            if j == 4: out.append('s_mov_b32 exec_hi, 0')
            else: out.append('s_nop 0')
            out.append((f'buffer_load_dwordx4 v{vDma+j}, s[24:27], s{sKr} offen lds', f'g{S}'))
            if j == 4: out.append('s_mov_b32 exec_hi, -1')
        for ks2 in range(2):
            for tt in range(2):
                out.append((f'buffer_load_dwordx4 {Bf(S,ks2,tt)}, v{vB0+tt}, s[28:31], s{sKr} offen offset:{64*ks2}', f'g{S}'))
        return out
    def emit(x):
        if isinstance(x, tuple): k(x[0]); vm.issue(x[1])
        else: k(x)
    for S in range(PD):
        for x in loads(S, 128 * S): emit(x)
    k(f'''
v_lshrrev_b32 v{T}, 1, v{vTl}
v_xor_b32 v{T+1}, v{T}, v{vG}
v_lshlrev_b32 v{T+2}, 7, v{vTl}
v_lshl_add_u32 v{vRd}, v{T+1}, 4, v{T+2}
v_xor_b32 v{vRd+1}, 64, v{vRd}
v_add_u32 v{vRd+2}, {3*STG}, v{vRd}
v_add_u32 v{vRd+3}, {3*STG}, v{vRd+1}
v_add_u32 v{T+4}, {6*STG}, v{vRd}
v_add_u32 v{T+5}, {6*STG}, v{vRd+1}
''')
    def reads(st, S, ks2):
        buf = S % NBUF
        grp = buf // 3
        va = [vRd, vRd + 2, T + 4][grp] + ks2
        return [f'ds_read_b128 a[{F(st,jt)}:{F(st,jt)+3}], v{va} offset:{(buf%3)*STG + jt*2048}' for jt in range(9)]
    def kstep(S, ks2, st, extra, first=False):
        ms = []
        for jt in range(9):
            for tt in range(2):
                b = F(st, jt)
                c = '0' if first else ACC(jt, tt)
                ms.append(f'v_mfma_f32_16x16x32_bf16 {ACC(jt,tt)}, a[{b}:{b+3}], {Bf(S,ks2,tt)}, {c}')
        ri = 0
        for i, m in enumerate(ms):
            k(m)
            n = 0
            while ri < len(extra) and n < 2:
                x = extra[ri]; emit(x); ri += 1
                t = x[0] if isinstance(x, tuple) else x
                if not t.startswith('s_'): n += 1
                if t == 's_mov_b32 exec_hi, 0':
                    emit(extra[ri]); emit(extra[ri+1]); ri += 2; n += 1
        assert ri == len(extra)
    def stage(S, rel, first=False, pre=True, last=False, extra2=[]):
        k('s_waitcnt lgkmcnt(0)')
        kstep(S, 0, 0, reads(1, S, 1), first)
        ex = []
        if not last:
            vm.wait(f'g{S+1}'); k('s_barrier')
            ex = reads(0, S + 1, 0)
        if pre: ex = ex + loads(S + PD, rel)
        ex = ex + extra2
        k('s_waitcnt lgkmcnt(0)')
        kstep(S, 1, 1, ex)
    vm.wait('g0'); k('s_barrier')
    for r in reads(0, 0, 0): k(r)
    stage(0, 128 * PD, first=True)
    k(f's_mov_b32 s{sCnt}, 3')
    k.label('L_wsp_loop')
    q0 = [t for t in vm.q]
    for S in range(1, 9): stage(S, 128 * (S + PD))
    sh = lambda t: 'g%d' % (int(t[1:]) + 8)
    assert vm.q == [sh(t) for t in q0], (vm.q, q0)
    k(f's_add_u32 s{sKo}, s{sKo}, 1024\ns_sub_u32 s{sCnt}, s{sCnt}, 1\ns_cmp_lg_u32 s{sCnt}, 0\ns_cbranch_scc1 L_wsp_loop')
    vm.q = ['g%d' % (int(t[1:]) + 16) for t in vm.q]
    k(f'''
v_mul_u32_u24 v{vE}, 4608, v{vTl}
v_lshl_add_u32 v{vE}, v{vG}, 3, v{vE}
s_mul_i32 s{sEo}, s{sT0}, 4608
s_mul_i32 s{sTmp}, s{sFt}, 288
s_add_u32 s{sEo}, s{sEo}, s{sTmp}
s_add_u32 s{sEo+1}, s{sEo}, {16*4608}
v_lshlrev_b32 v{T}, 1, v{vTl}
s_lshl_b32 s{sTmp}, s{sT0}, 1
''')
    srd_in(k, 28, 6, 4096)
    k(f'buffer_load_ushort v{vBias}, v{T}, s[28:31], s{sTmp} offen')
    k(f'buffer_load_ushort v{vBias+1}, v{T}, s[28:31], s{sTmp} offen offset:32')
    vm.issue('z'); vm.issue('z')
    for S in range(25, 32):
        ex = []
        if S in (27, 28, 29):
            for jt in range(3 * (S - 27), 3 * (S - 27) + 3):
                for tt in range(2):
                    d = Z1 + (jt * 2 + tt) * 2
                    ex.append((f'buffer_load_dwordx2 v[{d}:{d+1}], v{vE}, s[32:35], s{sEo+tt} offen offset:{32*jt}', 'z'))
        stage(S, 0, pre=False, last=(S == 31), extra2=ex)
    vm.wait('z')
    k(f'v_lshlrev_b32 v{vBias}, 16, v{vBias}\nv_lshlrev_b32 v{vBias+1}, 16, v{vBias+1}\ns_nop 4')
    for jt in range(9):
        for tt in range(2):
            a = AC + (jt * 2 + tt) * 4
            z = Z1 + (jt * 2 + tt) * 2
            t = T + 4 * ((jt * 2 + tt) % 4)
            k(f'''
v_lshlrev_b32 v{t}, 16, v{z}
v_and_b32 v{t+1}, 0xffff0000, v{z}
v_lshlrev_b32 v{t+2}, 16, v{z+1}
v_and_b32 v{t+3}, 0xffff0000, v{z+1}
v_add_f32 v{a}, v{a}, v{vBias+tt}
v_add_f32 v{a+1}, v{a+1}, v{vBias+tt}
v_add_f32 v{a+2}, v{a+2}, v{vBias+tt}
v_add_f32 v{a+3}, v{a+3}, v{vBias+tt}
v_pk_mul_f32 v[{a}:{a+1}], v[{a}:{a+1}], v[{t}:{t+1}]
v_pk_mul_f32 v[{a+2}:{a+3}], v[{a+2}:{a+3}], v[{t+2}:{t+3}]
v_cvt_pk_bf16_f32 v{z}, v{a}, v{a+1}
v_cvt_pk_bf16_f32 v{z+1}, v{a+2}, v{a+3}
buffer_store_dwordx2 v[{z}:{z+1}], v{vE}, s[36:39], s{sEo+tt} offen offset:{32*jt}
''')
    k.label(End)
    k('s_endpgm')
    return k
```

```python
from k_lngemm import *
from k_attn import *
from k_skgemm import *
from k_norm import *
from k_wsp import *
k1 = gen_lngemm(1)
k2 = gen_attn()
k3, b3, l3 = gen_skgemm(3)
k4 = gen_lngemm(4)
k5 = gen_norm()
k6 = gen_wsp()
k7, b7, l7 = gen_skgemm(7)
build_file([(k1, (192,1,1), (256,1,1), 4*18432), (k2, (256,1,1), (512,1,1), ATT_LDS), (k3, (256,1,1), (b3,1,1), l3), (k4, (256,1,1), (256,1,1), 4*18432),
  (k5, (256,1,1), (256,1,1), 1024), (k6, (256,1,1), (256,1,1), WSP_LDS), (k7, (256,1,1), (b7,1,1), l7)], 'g4.s')
```

```python
from asmlib import *
import math, struct

def f32bits(x): return struct.unpack('<I', struct.pack('<f', x))[0]
def hexf(x): return '0x%08x' % f32bits(x)

MB = 1 << 20
WS_Q = 0
WS_K = 3 * MB
WS_V = 6 * MB
WS_O = 9 * MB
WS_H = 12 * MB
WS_Z1 = 16 * MB
WS_Z2 = 26 * MB
WS_ST = 36 * MB
WS_U = 40 * MB
SZ_QK = 32 * 98304
SZ_V = 32 * 73728
SZ_X = 2048 * 576 * 2
SZ_Z = 2048 * 2304 * 2
SZ_ST = 2048 * 16 * 8

class VM:
    def __init__(self, k): self.k = k; self.q = []
    def issue(self, tag): self.q.append(tag)
    def wait(self, tag):
        idx = max([i for i, t in enumerate(self.q) if t == tag], default=-1)
        if idx < 0: return
        n = len(self.q) - 1 - idx
        assert n <= 63
        self.k(f's_waitcnt vmcnt({n})')
        self.q = self.q[idx + 1:]
    def count_after(self, tag):
        idx = max([i for i, t in enumerate(self.q) if t == tag], default=-1)
        return len(self.q) - 1 - idx

def load_ptrs(k):
    k('''
s_load_dwordx16 s[4:19], s[0:1], 0
s_load_dwordx2 s[20:21], s[0:1], 64
s_load_dwordx2 s[22:23], s[0:1], 80
''')

def srd_in(k, d, idx, size):
    k(f'''
s_mov_b32 s{d}, s{4+2*idx}
s_mov_b32 s{d+1}, s{5+2*idx}
s_mov_b32 s{d+2}, {size}
s_mov_b32 s{d+3}, 0x20000
''')
def srd_out(k, d):
    k(f'''
s_mov_b32 s{d}, s20
s_mov_b32 s{d+1}, s21
s_mov_b32 s{d+2}, {SZ_X}
s_mov_b32 s{d+3}, 0x20000
''')
def srd_ws(k, d, off, size):
    k(f'''
s_add_u32 s{d}, s22, {off}
s_addc_u32 s{d+1}, s23, 0
s_mov_b32 s{d+2}, {size}
s_mov_b32 s{d+3}, 0x20000
''')

WS_PROF = 128 * MB
class Prof:
    def __init__(self, k, kid, on=True, base=64):
        self.k = k; self.kid = kid; self.on = on; self.n = 0; self.base = base; self.names = []
    def start(self):
        if not self.on: return
        b = self.base
        self.k(f's_memrealtime s[{b}:{b+1}]')
        self.n = 1; self.names = ['rt0']
        self.stamp('t0')
    def stamp(self, name=''):
        if not self.on: return
        b = self.base + 2 * self.n
        assert b + 1 < 100
        self.k(f's_memtime s[{b}:{b+1}]')
        self.n += 1; self.names.append(name)
    def end(self, vt):
        if not self.on: return
        k = self.k
        self.stamp('end')
        b = self.base + 2 * self.n
        k(f's_memrealtime s[{b}:{b+1}]'); self.n += 1; self.names.append('rt1')
        k('s_mov_b64 exec, -1')
        k('s_waitcnt vmcnt(0) lgkmcnt(0)')
        k(f'v_mov_b32 v{vt}, 0')
        for i in range(self.n):
            k(f'v_writelane_b32 v{vt}, s{self.base+2*i}, {i}')
        srd_ws(k, 24, WS_PROF + self.kid * MB, MB)
        k(f'''
v_lshlrev_b32 v{vt+1}, 2, v0
s_lshl_b32 s{self.base}, s2, 12
s_nop 3
buffer_store_dword v{vt}, v{vt+1}, s[24:27], s{self.base} offen
''')
        import json
        try: d = json.load(open('prof_names.json'))
        except Exception: d = {}
        d[str(self.kid)] = self.names
        json.dump(d, open('prof_names.json', 'w'))
```

```python
from common import *
WS_O = 9 * MB
WS_H = 12 * MB
WS_HS = 15 * MB
WS_CS = 15 * MB + 512 * 1024
WS_CNT = 15 * MB + 768 * 1024
WS_Z1 = 16 * MB
WS_Z2 = 26 * MB
WS_ST = 36 * MB
WS_U = 40 * MB
WS_WIN = 50 * MB
WS_WOUT = 56 * MB
WS_WO = 59 * MB
WS_WSP = 60 * MB
WS_END = 69 * MB
ONES = '0x3f803f80'

def dma_pattern(k, vDma, vLane, T, rowb, kind='N', n=9, q0=0):
    for j in range(n):
        k(f'''
v_add_u32 v{T}, {q0 + 64*j}, v{vLane}
v_mul_u32_u24 v{T+1}, 3641, v{T}
v_lshrrev_b32 v{T+1}, 16, v{T+1}
v_mul_u32_u24 v{T+2}, 18, v{T+1}
v_sub_u32 v{T+2}, v{T}, v{T+2}
v_and_b32 v{T+3}, 8, v{T+1}
v_xor_b32 v{T+3}, v{T+3}, v{T+2}
v_cmp_gt_u32 vcc, 16, v{T+2}
''')
        if kind == 'P1':
            k(f'''
v_lshrrev_b32 v{T+4}, 4, v{T+1}
v_mul_u32_u24 v{T+4}, 18, v{T+4}
v_and_b32 v{T+5}, 3, v{T+1}
v_add_u32 v{T+4}, v{T+4}, v{T+5}
v_bfe_u32 v{T+5}, v{T+1}, 3, 1
v_lshl_add_u32 v{T+4}, v{T+5}, 2, v{T+4}
v_bfe_u32 v{T+5}, v{T+1}, 2, 1
v_lshl_add_u32 v{T+1}, v{T+5}, 3, v{T+4}
''')
        elif kind == 'P2':
            k(f'''
v_lshrrev_b32 v{T+4}, 1, v{T+1}
v_mul_u32_u24 v{T+4}, 18, v{T+4}
v_and_b32 v{T+5}, 1, v{T+1}
v_add3_u32 v{T+1}, v{T+4}, v{T+5}, 16
''')
        else:
            k('s_nop 0')
        k(f'''
v_mul_u32_u24 v{T+1}, {rowb}, v{T+1}
v_cndmask_b32 v{T+2}, v{T+2}, v{T+3}, vcc
v_lshl_add_u32 v{vDma+j}, v{T+2}, 4, v{T+1}
''')

def tr_addr(k, vTrA, vLane, vTl, vG, T, sBase=None):
    k(f'''
v_lshrrev_b32 v{T}, 2, v{vTl}
v_lshl_add_u32 v{T}, v{vG}, 3, v{T}
v_mul_u32_u24 v{T}, 288, v{T}
v_and_b32 v{T+1}, 3, v{vLane}
v_lshl_add_u32 v{vTrA+2}, v{T+1}, 3, v{T}
''')
    if sBase is not None: k(f'v_add_u32 v{vTrA+2}, s{sBase}, v{vTrA+2}')
    k(f'''
v_and_b32 v{T+1}, 1, v{vG}
v_lshlrev_b32 v{T+1}, 7, v{T+1}
v_add_u32 v{vTrA}, v{vTrA+2}, v{T+1}
v_sub_u32 v{vTrA+1}, v{vTrA+2}, v{T+1}
''')

def gen_retile(k, End, wreg):
    vm = VM(k)
    vLane, vTl, vG, vL16 = 1, 2, 3, 4
    vTr = 5
    vDma = 8
    vDma2 = 17
    FR = 28
    CS = 100
    vOn = 110
    T = 112
    sW, sGw, sTmp, sLb, sSrc, sDst = 40, 41, 44, 48, 49, 50
    k(f'''
v_and_b32 v{vLane}, 63, v0
v_lshrrev_b32 v{T}, 6, v0
v_and_b32 v{vTl}, 15, v0
v_readfirstlane_b32 s{sW}, v{T}
v_lshrrev_b32 v{vG}, 4, v{vLane}
v_lshlrev_b32 v{vL16}, 4, v{vLane}
s_sub_u32 s{sGw}, s2, 192
s_lshl_b32 s{sGw}, s{sGw}, 2
s_add_u32 s{sGw}, s{sGw}, s{sW}
s_mul_i32 s{sLb}, s{sW}, {wreg}
''')
    srd_ws(k, 32, 0, WS_END)
    tr_addr(k, vTr, vLane, vTl, vG, T, sLb)
    def dma(u, soff, vd):
        for j in range(9):
            k(f's_add_u32 m0, s{sLb}, {(u%3)*9216 + j*1024}')
            k(f's_add_u32 s{sTmp+1}, s{sSrc}, {soff}' if not isinstance(soff, str) else f's_mov_b32 s{sTmp+1}, {soff}')
            k(f'buffer_load_dwordx4 v{vd+j}, s[28:31], s{sTmp+1} offen lds')
            vm.issue(f'u{u}')
    def proc(u, doff, cs=False, nxt=None):
        vm.wait(f'u{u}')
        fb = FR + 36 * (u % 2)
        for jt in range(9):
            va = vTr + (0 if jt < 4 else (1 if jt < 8 else 2))
            for h in range(2):
                k(f'ds_read_b64_tr_b16 v[{fb+4*jt+2*h}:{fb+4*jt+2*h+1}], v{va} offset:{(u%3)*9216 + 4*h*288 + jt*32}')
        k(f's_add_u32 s{sTmp+2}, s{sDst}, {doff}' if not isinstance(doff, str) else f's_mov_b32 s{sTmp+2}, {doff}')
        k(f's_add_u32 s{sTmp+3}, s{sTmp+2}, 4096')
        k('s_waitcnt lgkmcnt(0)')
        if nxt: nxt()
        for jt in range(9):
            if jt == 8: k(f's_add_u32 s{sTmp+3}, s{sTmp+3}, 4096')
            k(f'buffer_store_dwordx4 v[{fb+4*jt}:{fb+4*jt+3}], v{vL16}, s[32:35], s{sTmp+2 if jt < 4 else sTmp+3} offen offset:{(jt%4)*1024}')
            if cs:
                for i in range(4):
                    k(f'v_dot2_f32_bf16 v{CS+jt}, v{fb+4*jt+i}, v{vOn}, v{CS+jt}')
    k(f's_cmp_ge_u32 s{sGw}, 192\ns_cbranch_scc1 L_rt_b')
    srd_in(k, 28, 4, 576 * 4608 * 2)
    dma_pattern(k, vDma, vLane, T, 9216)
    k(f'''
s_mul_i32 s{sTmp}, s{sGw}, 10923
s_lshr_b32 s{sTmp}, s{sTmp}, 16
s_mul_i32 s{sTmp+1}, s{sTmp}, 6
s_sub_u32 s{sTmp+1}, s{sGw}, s{sTmp+1}
s_mul_i32 s{sSrc}, s{sTmp+1}, {3*32*9216}
s_mul_i32 s{sTmp+2}, s{sTmp}, 288
s_add_u32 s{sSrc}, s{sSrc}, s{sTmp+2}
s_mul_i32 s{sDst}, s{sGw}, {3*9216}
s_add_u32 s{sDst}, s{sDst}, {WS_WIN}
s_mul_i32 s51, s{sTmp+1}, {4608*4}
s_mul_i32 s{sTmp+2}, s{sTmp}, 576
s_add_u32 s51, s51, s{sTmp+2}
s_add_u32 s51, s51, {WS_CS}
v_mov_b32 v{vOn}, {ONES}
''')
    for jt in range(9): k(f'v_mov_b32 v{CS+jt}, 0')
    for u in range(3): dma(u, u * 32 * 9216, vDma)
    for u in range(3): proc(u, u * 9216, cs=True)
    for jt in range(9):
        t = T + 2 * (jt % 4)
        k(f'''
v_mov_b32 v{t}, v{CS+jt}
v_mov_b32 v{t+1}, v{CS+jt}
s_nop 1
v_permlane32_swap_b32 v{t}, v{t+1}
v_add_f32 v{t}, v{t}, v{t+1}
v_mov_b32 v{t+1}, v{t}
s_nop 1
v_permlane16_swap_b32 v{t}, v{t+1}
v_add_f32 v{CS+jt}, v{t}, v{t+1}
''')
    k(f'v_lshlrev_b32 v{T+8}, 2, v{vTl}\ns_mov_b64 exec, 0xffff')
    for jt in range(9):
        k(f'buffer_store_dword v{CS+jt}, v{T+8}, s[32:35], s51 offen offset:{64*jt}')
    k(f's_branch {End}')
    k.label('L_rt_b')
    vm.q = []
    k(f's_cmp_ge_u32 s{sGw}, 240\ns_cbranch_scc1 L_rt_c')
    srd_in(k, 28, 7, 2304 * 576 * 2)
    dma_pattern(k, vDma, vLane, T, 1152)
    k(f'''
s_sub_u32 s{sGw}, s{sGw}, 192
s_mul_i32 s{sTmp}, s{sGw}, 5462
s_lshr_b32 s{sTmp}, s{sTmp}, 16
s_mul_i32 s{sTmp+1}, s{sTmp}, 12
s_sub_u32 s{sTmp+1}, s{sGw}, s{sTmp+1}
s_mul_i32 s{sSrc}, s{sTmp+1}, {6*32*1152}
s_mul_i32 s{sTmp+2}, s{sTmp}, 288
s_add_u32 s{sSrc}, s{sSrc}, s{sTmp+2}
s_mul_i32 s{sDst}, s{sGw}, {6*9216}
s_add_u32 s{sDst}, s{sDst}, {WS_WOUT}
''')
    for u in range(3): dma(u, u * 32 * 1152, vDma)
    for u in range(6):
        proc(u, u * 9216, nxt=(lambda u=u: dma(u + 3, (u + 3) * 32 * 1152, vDma)) if u + 3 < 6 else None)
    k(f's_branch {End}')
    k.label('L_rt_c')
    vm.q = []
    srd_in(k, 28, 2, 576 * 576 * 2)
    dma_pattern(k, vDma, vLane, T, 1152, 'P1')
    dma_pattern(k, vDma2, vLane, T, 1152, 'P2')
    k(f'''
s_sub_u32 s{sGw}, s{sGw}, 240
s_lshr_b32 s{sTmp}, s{sGw}, 2
s_and_b32 s{sTmp+1}, s{sGw}, 3
s_mul_i32 s{sSrc}, s{sTmp+1}, {4*36*1152}
s_mul_i32 s{sTmp+2}, s{sTmp}, 288
s_add_u32 s{sSrc}, s{sSrc}, s{sTmp+2}
s_mul_i32 s{sDst}, s{sTmp}, {18*9216}
s_add_u32 s{sDst}, s{sDst}, {WS_WO}
s_and_b32 s{sTmp+3}, s{sGw}, 1
s_mul_i32 s52, s{sTmp+3}, {18*16*1152}
s_add_u32 s52, s52, s{sTmp+2}
s_mul_i32 s53, s{sTmp+3}, 9216
s_add_u32 s53, s53, s{sDst}
s_add_u32 s53, s53, {16*9216}
s_mul_i32 s{sTmp+1}, s{sTmp+1}, {4*9216}
s_add_u32 s{sDst}, s{sDst}, s{sTmp+1}
v_mov_b32 v{T+8}, -1.0
v_mov_b32 v{T+9}, -1.0
v_mov_b32 v{T+10}, -1.0
v_mov_b32 v{T+11}, -1.0
s_lshl_b32 s{sTmp}, s{sGw}, 14
s_add_u32 s{sTmp}, s{sTmp}, {WS_ST}
''')
    for i in range(16):
        k(f'buffer_store_dwordx4 v[{T+8}:{T+11}], v{vL16}, s[32:35], s{sTmp} offen offset:{(i%4)*1024}')
        if i % 4 == 3: k(f's_add_u32 s{sTmp}, s{sTmp}, 4096')
    for u in range(3): dma(u, u * 36 * 1152, vDma)
    proc(0, 0, nxt=lambda: dma(3, 3 * 36 * 1152, vDma))
    proc(1, 9216, nxt=lambda: dma(4, 's52', vDma2))
    proc(2, 2 * 9216); proc(3, 3 * 9216); proc(4, 's53')
    k(f's_branch {End}')
```

```python
from common2 import *

class Gemm:
    STG = 18432
    def __init__(self, k, vm, NST, NBUF, regs, srdA, FA, mfma, loadsB, PDA=6, PDB=7, ramp=3):
        self.k = k; self.vm = vm; self.NST = NST; self.NBUF = NBUF
        self.vDma, self.vRd, self.sM0, self.sKa = regs
        self.srdA = srdA; self.FA = FA; self.mfma = mfma; self.loadsB = loadsB
        self.PDA = PDA; self.PDB = PDB; self.ramp = ramp
        self.nA = self.nB = 0
        self.jump = {}
        self.apos = (9, 11, 13, 15, 17); self.bpos = (9, 11, 13, 15); self.rpos = list(range(9))
    def setup(self, vL16, sW):
        k = self.k; STG = self.STG
        k(f'''
s_mul_i32 s{self.sM0}, s{sW}, 4608
v_add_u32 v{self.vDma}, s{self.sM0}, v{vL16}
v_add_u32 v{self.vDma+1}, 4096, v{self.vDma}
v_mov_b32 v{self.vRd}, v{vL16}
v_add_u32 v{self.vRd+1}, {3*STG}, v{vL16}
v_add_u32 v{self.vRd+2}, {6*STG}, v{vL16}
''')
    def emit(self, x):
        if isinstance(x, tuple): self.k(x[0]); self.vm.issue(x[1])
        else: self.k(x)
    def emitg(self, g):
        for x in g: self.emit(x)
    def loadsA(self, S):
        buf = S % self.NBUF; STG = self.STG; s = self.srdA
        out = []
        for j in range(5):
            pre = [f's_add_u32 m0, s{self.sM0}, {buf*STG}', 's_nop 0'] if j == 0 else []
            if j == 4: pre = [f's_add_u32 m0, s{self.sM0}, {buf*STG+4096}', 's_mov_b32 exec_hi, 0']
            ins = (f'buffer_load_dwordx4 v{self.vDma if j < 4 else self.vDma+1}, s[{s}:{s+3}], s{self.sKa} offen offset:{1024*j if j < 4 else 0} lds', f'a{S}')
            post = []
            if j == 4: post = ['s_mov_b32 exec_hi, -1'] + self.jump.get(S + 1, [f's_add_u32 s{self.sKa}, s{self.sKa}, {STG}'])
            out.append(pre + [ins] + post)
        return out
    def prologue(self):
        for S in range(self.ramp):
            for g in self.loadsA(S): self.emitg(g)
            for g in self.loadsB(S): self.emitg(g)
        self.nA = self.nB = self.ramp
    def reads(self, st, S, ks2):
        buf = S % self.NBUF
        va = self.vRd + buf // 3
        return [[f'ds_read_b128 {self.FA(st,jt)}, v{va} offset:{(buf%3)*self.STG + (ks2*9+jt)*1024}'] for jt in range(9)]
    def kstep(self, S, ks2, st, slots):
        i = 0
        for jt in range(9):
            for tt in range(2):
                self.k(self.mfma(S, ks2, st, jt, tt))
                for g in slots.get(i, []): self.emitg(g)
                i += 1
    def place(self, slots, groups, pos):
        assert len(groups) <= len(pos), (len(groups), len(pos))
        for g, p in zip(groups, pos): slots.setdefault(p, []).append(g)
    def burst(self, upto):
        while self.nA <= upto and self.nA < self.NST:
            for g in self.loadsA(self.nA): self.emitg(g)
            self.nA += 1
    def start(self):
        self.vm.wait('a0'); self.vm.wait('b0'); self.k('s_barrier')
        for r in self.reads(0, 0, 0): self.emitg(r)
    def stage(self, S, extra0=[], extra1=[], fill0=None, fill1=None):
        k = self.k; vm = self.vm
        la = []; lb = []
        while self.nA <= S + self.PDA and self.nA < self.NST and len(la) < 2: la.append(self.nA); self.nA += 1
        while self.nB <= S + self.PDB and self.nB < self.NST and len(lb) < 2: lb.append(self.nB); self.nB += 1
        last = (S == self.NST - 1)
        k('s_waitcnt lgkmcnt(0)')
        sl = {}
        self.place(sl, self.reads(1, S, 1), self.rpos)
        ga = [g for s_ in la for g in self.loadsA(s_)] + extra0
        self.place(sl, ga, self.apos if len(ga) <= 5 else [1, 3, 5, 7, 9, 11, 13, 15, 16, 17])
        if fill0:
            for p, gs in fill0.items(): sl.setdefault(p, []).extend(gs)
        self.kstep(S, 0, 0, sl)
        sl = {}
        if not last:
            vm.wait(f'a{S+1}'); vm.wait(f'b{S+1}'); k('s_barrier')
            self.place(sl, self.reads(0, S + 1, 0), self.rpos)
        gb = [g for s_ in lb for g in self.loadsB(s_)] + extra1
        self.place(sl, gb, self.bpos if len(gb) <= 4 else [1, 3, 5, 7, 9, 11, 13, 15, 17])
        if fill1:
            for p, gs in fill1.items(): sl.setdefault(p, []).extend(gs)
        k('s_waitcnt lgkmcnt(0)')
        self.kstep(S, 1, 1, sl)
```

```python
from common2 import *
from k2_win import redg, lnstats

QX = 0
QW = 65536
Q_CS = QW + 4 * 18432
Q_RS = Q_CS + 1024
QKV_LDS = Q_RS + 1024

def gen_qkv(prof=False, ramp=2, PD=3):
    name = 'qkv_kernel'
    k = Kernel(name)
    vm = VM(k)
    End = f'L_end_{name}'
    NBUF = 4; NST = 9; ROWB = 3456
    vLane, vTl, vG, vL16 = 1, 2, 3, 4
    vOn = 5
    vXd = 6
    vWd = 10
    vXr = 15
    vR = 18; vN = 20
    vRs = 22
    vTr = 24
    WF = 42
    XF = 114
    AC = 130
    SA = 202
    T = 216
    def ACC(q, tt): b = AC + (q * 2 + tt) * 4; return f'v[{b}:{b+3}]'
    def Wf(st, q): return WF + st * 36 + q * 4
    def Xf(st, tt): return XF + st * 8 + tt * 4
    sW, sMt, sNt, sT0, sTmp, sXm, sWm, sXo, sWo, sEo, sScale = 40, 41, 42, 43, 44, 48, 49, 50, 51, 52, 53
    sJt = 54
    k(f's_cmp_ge_u32 s2, 256\ns_cbranch_scc1 {End}')
    pf = Prof(k, 1, prof); pf.start()
    load_ptrs(k)
    k('s_cmp_ge_u32 s2, 192\ns_cbranch_scc1 L_retile')
    k(f'''
v_and_b32 v{vLane}, 63, v0
v_lshrrev_b32 v{T}, 6, v0
v_and_b32 v{vTl}, 15, v0
v_readfirstlane_b32 s{sW}, v{T}
v_lshrrev_b32 v{vG}, 4, v{vLane}
v_lshlrev_b32 v{vL16}, 4, v{vLane}
s_and_b32 s{sTmp}, s2, 7
s_lshr_b32 s{sTmp+1}, s2, 3
s_mul_i32 s{sTmp+2}, s{sTmp+1}, 43
s_lshr_b32 s{sTmp+2}, s{sTmp+2}, 8
s_mul_i32 s{sTmp+3}, s{sTmp+2}, 6
s_sub_u32 s{sTmp+1}, s{sTmp+1}, s{sTmp+3}
s_lshr_b32 s{sMt}, s{sTmp}, 1
s_lshl_b32 s{sMt}, s{sMt}, 2
s_add_u32 s{sMt}, s{sMt}, s{sTmp+2}
s_and_b32 s{sNt}, s{sTmp}, 1
s_mul_i32 s{sNt}, s{sNt}, 6
s_add_u32 s{sNt}, s{sNt}, s{sTmp+1}
s_lshl_b32 s{sT0}, s{sMt}, 7
s_lshl_b32 s{sTmp}, s{sW}, 5
s_add_u32 s{sT0}, s{sT0}, s{sTmp}
s_lshl_b32 s{sXm}, s{sW}, 14
s_mul_i32 s{sWm}, s{sW}, 4608
s_add_u32 s{sWm}, s{sWm}, {QW}
s_mul_i32 s{sXo}, s{sT0}, 1152
s_mul_i32 s{sWo}, s{sNt}, 288
v_lshrrev_b32 v{T}, 3, v{vLane}
v_lshrrev_b32 v{T+1}, 1, v{T}
v_xor_b32 v{T+1}, v{T+1}, v{vLane}
v_and_b32 v{T+1}, 7, v{T+1}
v_mul_u32_u24 v{T}, 1152, v{T}
v_lshl_add_u32 v{vXd}, v{T+1}, 4, v{T}
v_xor_b32 v{vXd+1}, 64, v{vXd}
v_add_u32 v{vXd+1}, {8*1152}, v{vXd+1}
v_add_u32 v{vXd+2}, {16*1152}, v{vXd}
v_add_u32 v{vXd+3}, {16*1152}, v{vXd+1}
s_mul_i32 s{sTmp}, s{sW}, 288
v_add_u32 v{T+8}, s{sTmp}, v{vLane}
''')
    dma_pattern(k, vWd, T + 8, T, ROWB, n=5)
    k('s_waitcnt lgkmcnt(0)')
    srd_in(k, 24, 0, SZ_X); srd_in(k, 28, 1, 576 * 1728 * 2)
    def emit(x):
        if isinstance(x, tuple): k(x[0]); vm.issue(x[1])
        else: k(x)
    def emitg(g):
        for x in g: emit(x)
    def loadsX(S):
        buf = S % NBUF
        return [[f's_add_u32 m0, s{sXm}, {buf*4096 + i*1024}', 's_nop 0', (f'buffer_load_dwordx4 v{vXd+i}, s[24:27], s{sXo} offen lds', f'x{S}')] + ([f's_add_u32 s{sXo}, s{sXo}, 128'] if i == 3 else []) for i in range(4)]
    def loadsW(S):
        buf = S % NBUF
        out = []
        for j in range(5):
            out.append([f's_add_u32 m0, s{sWm}, {buf*18432 + j*1024}', 's_mov_b32 exec_hi, 0' if j == 4 else 's_nop 0',
                        (f'buffer_load_dwordx4 v{vWd+j}, s[28:31], s{sWo} offen lds', f'w{S}')] + (['s_mov_b32 exec_hi, -1', f's_add_u32 s{sWo}, s{sWo}, {64*ROWB}'] if j == 4 else []))
        return out
    for S in range(ramp):
        for g in loadsW(S): emitg(g)
        for g in loadsX(S): emitg(g)
    srd_ws(k, 32, WS_Q, 9 * MB)
    k(f'''
v_lshrrev_b32 v{T}, 1, v{vTl}
v_xor_b32 v{T+1}, v{T}, v{vG}
v_lshlrev_b32 v{T+2}, 7, v{vTl}
v_lshl_add_u32 v{vXr}, v{T+1}, 4, v{T+2}
v_add_u32 v{vXr}, s{sXm}, v{vXr}
v_xor_b32 v{vXr+1}, 64, v{vXr}
v_lshrrev_b32 v{T}, 2, v{vTl}
v_lshl_add_u32 v{T}, v{vG}, 3, v{T}
v_mul_u32_u24 v{T}, 288, v{T}
v_and_b32 v{T+1}, 3, v{vLane}
v_lshl_add_u32 v{T}, v{T+1}, 3, v{T}
v_add_u32 v{T}, {QW}, v{T}
v_and_b32 v{T+1}, 1, v{vG}
v_lshlrev_b32 v{T+1}, 7, v{T+1}
v_mov_b32 v{vOn}, {ONES}
s_lshl_b32 s{sTmp}, s{sW}, 8
s_add_u32 s{sTmp}, s{sTmp}, {Q_RS}
v_lshlrev_b32 v{vRs}, 2, v{vTl}
v_add_u32 v{vRs}, s{sTmp}, v{vRs}
v_lshlrev_b32 v{vRs+1}, 4, v{vG}
v_add_u32 v{vRs+1}, s{sTmp}, v{vRs+1}
''')
    for q in range(9):
        k(f'''
s_lshl_b32 s{sJt+q}, s{sW}, 1
s_add_u32 s{sJt+q}, s{sJt+q}, {q}
s_sub_u32 s{sTmp}, s{sJt+q}, 9
s_cmp_ge_u32 s{sJt+q}, 9
s_cselect_b32 s{sJt+q}, s{sTmp}, s{sJt+q}
s_cmp_lt_u32 s{sJt+q}, 4
s_cselect_b32 s{sTmp}, 1, -1
s_cmp_eq_u32 s{sJt+q}, 8
s_cselect_b32 s{sTmp}, 0, s{sTmp}
s_lshl_b32 s{sTmp+1}, s{sJt+q}, 5
v_mad_i32_i24 v{vTr+q}, v{T+1}, s{sTmp}, v{T}
v_add_u32 v{vTr+q}, s{sTmp+1}, v{vTr+q}
v_add_u32 v{vTr+9+q}, {2*18432}, v{vTr+q}
''')
    for i in range(14): k(f'v_mov_b32 v{SA+i}, 0')
    def reads(st, S, ks2):
        buf = S % NBUF
        out = []
        for tt in range(2):
            out.append([f'ds_read_b128 v[{Xf(st,tt)}:{Xf(st,tt)+3}], v{vXr+ks2} offset:{buf*4096 + tt*2048}'])
        for q in range(9):
            va = vTr + q + (9 if buf >= 2 else 0)
            g = []
            for h in range(2):
                b = Wf(st, q) + 2 * h
                g.append(f'ds_read_b64_tr_b16 v[{b}:{b+1}], v{va} offset:{(buf%2)*18432 + (32*ks2 + 4*h)*288}')
            out.append(g)
        return out
    def stats(st):
        out = []
        for i in range(4):
            for tt in range(2):
                x = Xf(st, tt) + i
                out.append(f'v_dot2_f32_bf16 v{SA+4*tt+i%2}, v{x}, v{vOn}, v{SA+4*tt+i%2}')
                out.append(f'v_dot2_f32_bf16 v{SA+4*tt+2+i%2}, v{x}, v{x}, v{SA+4*tt+2+i%2}')
            for q in range(3):
                out.append(f'v_dot2_f32_bf16 v{SA+8+2*q+i%2}, v{Wf(st,q)+i}, v{vOn}, v{SA+8+2*q+i%2}')
        return out
    def kstep(ori, first, st, rd, ld):
        sl = {}
        for i, g in enumerate(rd): sl.setdefault(i, []).append(g)
        lp = [11, 13, 15, 16, 17] if len(ld) <= 5 else [8, 9, 10, 11, 12, 13, 14, 15, 16, 17]
        for g, p in zip(ld, lp): sl.setdefault(p, []).append(g)
        sv = stats(st)
        pos = [4, 5, 6, 7, 8, 9, 10, 11, 12, 13, 14, 15, 16, 17]
        for i, x in enumerate(sv): sl.setdefault(pos[i // 2], []).append([x])
        i = 0
        for q in range(9):
            for tt in range(2):
                c = '0' if first else ACC(q, tt)
                w = f'v[{Wf(st,q)}:{Wf(st,q)+3}]'; x = f'v[{Xf(st,tt)}:{Xf(st,tt)+3}]'
                k(f'v_mfma_f32_16x16x32_bf16 {ACC(q,tt)}, {w if ori == 0 else x}, {x if ori == 0 else w}, {c}')
                for g in sl.get(i, []): emitg(g)
                i += 1
    pf.stamp('issue')
    k(f's_cmp_ge_u32 s{sNt}, 8\ns_cbranch_scc1 L_qkv_ori1')
    q0 = list(vm.q); n0 = pf.n; nm0 = list(pf.names)
    for ori in range(2):
        vm.q = list(q0); pf.n = n0; pf.names = list(nm0)
        if ori == 1: k.label('L_qkv_ori1')
        nX = nW = ramp
        vm.wait('w0'); vm.wait('x0'); k('s_barrier')
        pf.stamp('g0')
        for g in reads(0, 0, 0): emitg(g)
        for S in range(NST):
            lx = []; lw = []
            while nX <= S + PD and nX < NST and len(lx) < 2: lx.append(nX); nX += 1
            while nW <= S + PD and nW < NST and len(lw) < 2: lw.append(nW); nW += 1
            k('s_waitcnt lgkmcnt(0)')
            kstep(ori, S == 0, 0, reads(1, S, 1), [g for s_ in lx for g in loadsX(s_)])
            rd = []
            if S < NST - 1:
                vm.wait(f'w{S+1}'); vm.wait(f'x{S+1}'); k('s_barrier')
                rd = reads(0, S + 1, 0)
            k('s_waitcnt lgkmcnt(0)')
            kstep(ori, False, 1, rd, [g for s_ in lw for g in loadsW(s_)])
        pf.stamp('loop')
        for i in range(7): k(f'v_add_f32 v{SA+2*i}, v{SA+2*i}, v{SA+2*i+1}')
        redg(k, [SA + 2 * i for i in range(7)], T)
        k(f'v_lshlrev_b32 v{T}, 2, v{vTl}\nv_add_u32 v{T}, {Q_CS}, v{T}')
        for q in range(3):
            k(f's_lshl_b32 s{sTmp}, s{sJt+q}, 6\nv_add_u32 v{T+1+q}, s{sTmp}, v{T}\nds_write_b32 v{T+1+q}, v{SA+8+2*q}')
        for tt in range(2):
            lnstats(k, SA + 4 * tt, SA + 4 * tt + 2, 576, vR + tt, vN + tt, T)
        CS = WF
        if ori == 0:
            c = (18 ** -0.5) * math.log2(math.e)
            k(f'''
s_lshr_b32 s{sTmp}, s{sNt}, 2
s_mul_i32 s{sEo}, s{sTmp}, {WS_K}
s_cmp_eq_u32 s{sTmp}, 0
s_cselect_b32 s{sScale}, {hexf(c)}, 1.0
s_and_b32 s{sTmp}, s{sNt}, 3
s_mul_i32 s{sTmp}, s{sTmp}, {8*98304}
s_add_u32 s{sEo}, s{sEo}, s{sTmp}
s_lshl_b32 s{sTmp}, s{sMt}, 2
s_add_u32 s{sTmp}, s{sTmp}, s{sW}
s_mul_i32 s{sTmp}, s{sTmp}, 1536
s_add_u32 s{sEo}, s{sEo}, s{sTmp}
v_mul_f32 v{vR}, s{sScale}, v{vR}
v_mul_f32 v{vR+1}, s{sScale}, v{vR+1}
v_mul_f32 v{vN}, s{sScale}, v{vN}
v_mul_f32 v{vN+1}, s{sScale}, v{vN+1}
v_lshlrev_b32 v{T}, 4, v{vG}
v_add_u32 v{T}, {Q_CS}, v{T}
v_mul_u32_u24 v{T+1}, 296, v{vTl}
v_lshl_add_u32 v{T+1}, v{vG}, 3, v{T+1}
v_add_u32 v{T+1}, s{sXm}, v{T+1}
s_waitcnt lgkmcnt(0)
s_barrier
''')
            for q in range(9):
                k(f's_lshl_b32 s{sTmp}, s{sJt+q}, 6\nv_add_u32 v{T+2}, s{sTmp}, v{T}\nds_read_b128 v[{CS+4*q}:{CS+4*q+3}], v{T+2}')
            k('s_waitcnt lgkmcnt(0)')
            for q in range(9):
                k(f's_lshl_b32 s{sTmp}, s{sJt+q}, 5\nv_add_u32 v{T+2+q%2}, s{sTmp}, v{T+1}')
                for tt in range(2):
                    sel = 'op_sel_hi:[1,0]' if tt == 0 else 'op_sel:[0,1] op_sel_hi:[1,1]'
                    sel3 = 'op_sel_hi:[1,0,1]' if tt == 0 else 'op_sel:[0,1,0] op_sel_hi:[1,1,1]'
                    a = AC + (q * 2 + tt) * 4
                    t = T + 4 + 6 * tt
                    k(f'''
v_pk_mul_f32 v[{t}:{t+1}], v[{CS+4*q}:{CS+4*q+1}], v[{vN}:{vN+1}] {sel}
v_pk_mul_f32 v[{t+2}:{t+3}], v[{CS+4*q+2}:{CS+4*q+3}], v[{vN}:{vN+1}] {sel}
v_pk_fma_f32 v[{a}:{a+1}], v[{a}:{a+1}], v[{vR}:{vR+1}], v[{t}:{t+1}] {sel3}
v_pk_fma_f32 v[{a+2}:{a+3}], v[{a+2}:{a+3}], v[{vR}:{vR+1}], v[{t+2}:{t+3}] {sel3}
v_cvt_pk_bf16_f32 v{t+4}, v{a}, v{a+1}
v_cvt_pk_bf16_f32 v{t+5}, v{a+2}, v{a+3}
ds_write_b64 v{T+2+q%2}, v[{t+4}:{t+5}] offset:{tt*16*296}
''')
            k(f'''
v_and_b32 v{T}, 31, v{vLane}
v_lshlrev_b32 v{T+3}, 4, v{T}
v_mul_u32_u24 v{T}, 296, v{T}
v_add_u32 v{T}, s{sXm}, v{T}
v_lshrrev_b32 v{T+1}, 5, v{vLane}
v_mul_u32_u24 v{T+2}, 36, v{T+1}
v_add_u32 v{T+2}, v{T+2}, v{T}
v_lshl_add_u32 v{T}, v{T+1}, 4, v{T}
s_mov_b32 s{sTmp}, 98304
v_mul_lo_u32 v{T+1}, v{T+1}, s{sTmp}
v_add_u32 v{T+3}, v{T+3}, v{T+1}
s_waitcnt lgkmcnt(0)
''')
            for h in range(8):
                k(f'ds_read2_b32 v[{AC+4*h}:{AC+4*h+1}], v{T} offset0:{9*h} offset1:{9*h+1}')
                k(f'ds_read2_b32 v[{AC+4*h+2}:{AC+4*h+3}], v{T} offset0:{9*h+2} offset1:{9*h+3}')
            for i in range(4):
                k(f'ds_read_b32 v{AC+32+i}, v{T+2} offset:{72*i+32}')
            k('s_waitcnt lgkmcnt(0)')
            for h in range(8):
                k(f'buffer_store_dwordx4 v[{AC+4*h}:{AC+4*h+3}], v{vL16}, s[32:35], s{sEo} offen')
                if h % 2 == 0: k(f'buffer_store_dword v{AC+32+h//2}, v{T+3}, s[32:35], s{sEo} offen offset:1024')
                if h < 7: k(f's_add_u32 s{sEo}, s{sEo}, 98304')
        else:
            RP = WF + 16
            for tt in range(2):
                k(f'ds_write_b32 v{vRs}, v{vR+tt} offset:{64*tt}\nds_write_b32 v{vRs}, v{vN+tt} offset:{128+64*tt}')
            k(f'''
s_sub_u32 s{sTmp}, s{sNt}, 8
s_mul_i32 s{sEo}, s{sTmp}, {8*73728}
s_add_u32 s{sEo}, s{sEo}, {WS_V}
s_lshl_b32 s{sTmp}, s{sMt}, 2
s_add_u32 s{sTmp}, s{sTmp}, s{sW}
s_mul_i32 s{sTmp}, s{sTmp}, 1152
s_add_u32 s{sEo}, s{sEo}, s{sTmp}
v_and_b32 v{T+1}, 1, v{vG}
v_mul_u32_u24 v{T+1}, 288, v{T+1}
v_lshrrev_b32 v{T+2}, 1, v{vG}
v_lshl_add_u32 v{T+1}, v{T+2}, 3, v{T+1}
s_waitcnt lgkmcnt(0)
s_barrier
''')
            for q in range(9):
                k(f's_lshl_b32 s{sTmp}, s{sJt+q}, 6\nv_add_u32 v{T+2}, s{sTmp}, v{T}\nds_read_b32 v{CS+q}, v{T+2}')
            for tt in range(2):
                k(f'ds_read_b128 v[{RP+4*tt}:{RP+4*tt+3}], v{vRs+1} offset:{64*tt}')
                k(f'ds_read_b128 v[{RP+8+4*tt}:{RP+8+4*tt+3}], v{vRs+1} offset:{128+64*tt}')
            k(f's_mov_b32 s{sScale}, 73728\ns_waitcnt lgkmcnt(0)')
            for q in range(9):
                t = T + 4 + 16 * (q % 2)
                cp = CS + (q & ~1)
                sel = 'op_sel_hi:[1,0]' if q % 2 == 0 else 'op_sel:[0,1] op_sel_hi:[1,1]'
                k(f'''
s_lshl_b32 s{sTmp}, s{sJt+q}, 4
v_add_u32 v{t}, s{sTmp}, v{vTl}
v_mul_u32_u24 v{t+1}, 57, v{t}
v_lshrrev_b32 v{t+1}, 10, v{t+1}
v_mul_u32_u24 v{t+2}, 18, v{t+1}
v_sub_u32 v{t}, v{t}, v{t+2}
v_mul_lo_u32 v{t+1}, v{t+1}, s{sScale}
v_lshl_add_u32 v{t+1}, v{t}, 4, v{t+1}
v_add_u32 v{t+1}, v{t+1}, v{T+1}
''')
                for tt in range(2):
                    a = AC + (q * 2 + tt) * 4
                    r = RP + 4 * tt
                    u = t + 4 + 6 * tt
                    k(f'''
v_pk_mul_f32 v[{u}:{u+1}], v[{r+8}:{r+9}], v[{cp}:{cp+1}] {sel}
v_pk_mul_f32 v[{u+2}:{u+3}], v[{r+10}:{r+11}], v[{cp}:{cp+1}] {sel}
v_pk_fma_f32 v[{a}:{a+1}], v[{a}:{a+1}], v[{r}:{r+1}], v[{u}:{u+1}]
v_pk_fma_f32 v[{a+2}:{a+3}], v[{a+2}:{a+3}], v[{r+2}:{r+3}], v[{u+2}:{u+3}]
v_cvt_pk_bf16_f32 v{u+4}, v{a}, v{a+1}
v_cvt_pk_bf16_f32 v{u+5}, v{a+2}, v{a+3}
buffer_store_dwordx2 v[{u+4}:{u+5}], v{t+1}, s[32:35], s{sEo} offen offset:{576*tt}
''')
        pf.stamp('epi')
        if prof:
            k('s_waitcnt vmcnt(0)')
            pf.end(T)
        k(f's_branch {End}')
    k.label('L_retile')
    k('s_waitcnt lgkmcnt(0)')
    gen_retile(k, End, 27648)
    k.label(End)
    k('s_endpgm')
    return k
```

```python
from common2 import *

def gen_sk(stage, prof=False, RD=3):
    name = 'wo_kernel' if stage == 3 else 'wout_kernel'
    k = Kernel(name)
    vm = VM(k)
    End = f'L_end_{name}'
    KS = 18 if stage == 3 else 72
    NW = 6
    NKS = KS // NW
    vLane, vTl, vG = 1, 2, 3
    vL = 4
    vA1 = 7
    vF = 8
    vN = 9
    AF = 12
    AC = AF + 8 * RD
    RES = AC + 72
    T = RES + 6
    def ACC(jt, tt): b = AC + (jt * 2 + tt) * 4; return f'v[{b}:{b+3}]'
    def WF(ks, jt): b = (ks % RD) * 36 + jt * 4; return f'a[{b}:{b+3}]'
    def AFr(ks, tt): b = AF + (ks % RD) * 8 + tt * 4; return f'v[{b}:{b+3}]'
    sW, sNt, sTb, sTmp, sLb, sWo, sAo = 40, 41, 42, 44, 48, 49, 50
    sRn = 52
    sRf = 56
    k(f's_cmp_ge_u32 s2, 256\ns_cbranch_scc1 {End}')
    pf = Prof(k, stage, prof, base=70); pf.start()
    load_ptrs(k)
    assign(k, 1 if stage == 3 else 4, NW * 18432)
    k(f'''
v_and_b32 v{vLane}, 63, v0
v_lshrrev_b32 v{T}, 6, v0
v_and_b32 v{vTl}, 15, v0
v_readfirstlane_b32 s{sW}, v{T}
v_lshrrev_b32 v{vG}, 4, v{vLane}
v_lshlrev_b32 v{vL}, 4, v{vLane}
v_add_u32 v{vL+1}, 4096, v{vL}
v_add_u32 v{vL+2}, 8192, v{vL}
v_add_u32 v{vA1}, {KS*1024}, v{vL}
s_and_b32 s{sTmp}, s2, 7
s_lshr_b32 s{sTmp+1}, s2, 3
s_and_b32 s{sNt}, s{sTmp+1}, 3
s_lshr_b32 s{sTmp+1}, s{sTmp+1}, 2
s_lshl_b32 s{sTb}, s{sTmp}, 3
s_add_u32 s{sTb}, s{sTb}, s{sTmp+1}
s_mul_i32 s{sWo}, s{sNt}, {KS*9216}
s_mul_i32 s{sTmp}, s{sW}, {NKS*9216}
s_add_u32 s{sWo}, s{sWo}, s{sTmp}
s_mul_i32 s{sAo}, s{sTb}, {2*KS*1024}
s_mul_i32 s{sTmp}, s{sW}, {NKS*1024}
s_add_u32 s{sAo}, s{sAo}, s{sTmp}
s_mul_i32 s{sLb}, s{sW}, 18432
s_waitcnt lgkmcnt(0)
''')
    if stage == 3:
        srd_ws(k, 24, WS_O, SZ_X); srd_ws(k, 28, WS_WO, 576 * 576 * 2)
    else:
        srd_ws(k, 24, WS_U, SZ_Z); srd_ws(k, 28, WS_WOUT, 2304 * 576 * 2)
    def loads(ks):
        out = []
        for tt in range(2):
            out.append([(f'buffer_load_dwordx4 {AFr(ks,tt)}, v{vL if tt == 0 else vA1}, s[24:27], s{sAo} offen', f'g{ks}')] + ([f's_add_u32 s{sAo}, s{sAo}, 1024'] if tt == 1 else []))
        for jt in range(9):
            out.append([(f'buffer_load_dwordx4 {WF(ks,jt)}, v{vL + jt//4}, s[28:31], s{sWo} offen offset:{(jt%4)*1024}', f'g{ks}')] + ([f's_add_u32 s{sWo}, s{sWo}, 9216'] if jt == 8 else []))
        return out
    def emit(x):
        if isinstance(x, tuple): k(x[0]); vm.issue(x[1])
        else: k(x)
    def emitg(g):
        for x in g: emit(x)
    for ks in range(min(RD, NKS)):
        for g in loads(ks): emitg(g)
    if stage == 3:
        srd_in(k, 32, 0, SZ_X); srd_ws(k, 36, WS_H, 4 * MB)
    else:
        srd_ws(k, 32, WS_H, SZ_X); srd_out(k, 36)
    k(f'''
v_mul_u32_u24 v{vN}, 1152, v{vTl}
v_lshl_add_u32 v{vN}, v{vG}, 3, v{vN}
v_lshrrev_b32 v{T}, 1, v{vG}
v_lshlrev_b32 v{T}, 8, v{T}
v_lshl_add_u32 v{T}, v{vTl}, 4, v{T}
v_and_b32 v{T+1}, 1, v{vG}
v_lshl_add_u32 v{vF}, v{T+1}, 3, v{T}
s_and_b32 s{sTmp}, s{sW}, 1
s_lshl_b32 s{sTmp+1}, s{sTb}, 1
s_add_u32 s{sTmp}, s{sTmp}, s{sTmp+1}
s_lshr_b32 s{sTmp+1}, s{sW}, 1
s_mul_i32 s{sRn}, s{sTmp}, {16*1152}
s_mul_i32 s{sTmp+2}, s{sNt}, 288
s_add_u32 s{sRn}, s{sRn}, s{sTmp+2}
s_lshl_b32 s{sTmp+2}, s{sTmp+1}, 5
s_add_u32 s{sRn}, s{sRn}, s{sTmp+2}
s_mul_i32 s{sRf}, s{sTmp}, {18*1024}
s_mul_i32 s{sTmp+2}, s{sNt}, {9*512}
s_add_u32 s{sRf}, s{sRf}, s{sTmp+2}
s_lshl_b32 s{sTmp+2}, s{sTmp+1}, 9
s_add_u32 s{sRf}, s{sRf}, s{sTmp+2}
''')
    def resloads():
        out = []
        for i in range(3):
            if stage == 3: out.append([(f'buffer_load_dwordx2 v[{RES+2*i}:{RES+2*i+1}], v{vN}, s[32:35], s{sRn} offen offset:{96*i}', 'res')])
            else: out.append([(f'buffer_load_dwordx2 v[{RES+2*i}:{RES+2*i+1}], v{vF}, s[32:35], s{sRf} offen offset:{1536*i}', 'res')])
        return out
    if NKS <= RD:
        for g in resloads(): emitg(g)
    pf.stamp('issue')
    for ks in range(NKS):
        vm.wait(f'g{ks}')
        if ks == 0: pf.stamp('g0')
        for jt in range(9):
            for tt in range(2):
                c = '0' if ks == 0 else ACC(jt, tt)
                k(f'v_mfma_f32_16x16x32_bf16 {ACC(jt,tt)}, {WF(ks,jt)}, {AFr(ks,tt)}, {c}')
        if ks + RD < NKS:
            for g in loads(ks + RD): emitg(g)
            if ks + RD == NKS - 1:
                for g in resloads(): emitg(g)
    pf.stamp('loop')
    k(f'v_add_u32 v{T}, s{sLb}, v{vL}\ns_lshl_b32 s{sTmp}, s{sW}, 10\ns_nop 5')
    for t in range(18):
        k(f'ds_write_b128 v{T}, v[{AC+4*t}:{AC+4*t+3}] offset:{1024*t}')
    k(f'v_add_u32 v{T}, s{sTmp}, v{vL}\nv_add_u32 v{T+1}, {3*18432}, v{T}')
    k('s_waitcnt lgkmcnt(0)\ns_barrier')
    for i in range(3):
        for w in range(NW):
            b = AC + (i * NW + w) * 4
            k(f'ds_read_b128 v[{b}:{b+3}], v{T + w//3} offset:{(w%3)*18432 + i*6144}')
    pf.stamp('red')
    vm.wait('res')
    for i in range(3):
        k(f's_waitcnt lgkmcnt({12 - 6*i})')
        b = AC + (i * NW) * 4
        for w in (1, 3, 5):
            k(f'v_pk_add_f32 v[{b+4*w-4}:{b+4*w-3}], v[{b+4*w-4}:{b+4*w-3}], v[{b+4*w}:{b+4*w+1}]')
            k(f'v_pk_add_f32 v[{b+4*w-2}:{b+4*w-1}], v[{b+4*w-2}:{b+4*w-1}], v[{b+4*w+2}:{b+4*w+3}]')
        k(f'''
v_lshlrev_b32 v{T+4}, 16, v{RES+2*i}
v_and_b32 v{T+5}, 0xffff0000, v{RES+2*i}
v_lshlrev_b32 v{T+6}, 16, v{RES+2*i+1}
v_and_b32 v{T+7}, 0xffff0000, v{RES+2*i+1}
v_pk_add_f32 v[{b}:{b+1}], v[{b}:{b+1}], v[{b+8}:{b+9}]
v_pk_add_f32 v[{b+2}:{b+3}], v[{b+2}:{b+3}], v[{b+10}:{b+11}]
v_pk_add_f32 v[{T+4}:{T+5}], v[{T+4}:{T+5}], v[{b+16}:{b+17}]
v_pk_add_f32 v[{T+6}:{T+7}], v[{T+6}:{T+7}], v[{b+18}:{b+19}]
v_pk_add_f32 v[{b}:{b+1}], v[{b}:{b+1}], v[{T+4}:{T+5}]
v_pk_add_f32 v[{b+2}:{b+3}], v[{b+2}:{b+3}], v[{T+6}:{T+7}]
v_cvt_pk_bf16_f32 v{RES+2*i}, v{b}, v{b+1}
v_cvt_pk_bf16_f32 v{RES+2*i+1}, v{b+2}, v{b+3}
''')
        if stage == 3: k(f'buffer_store_dwordx2 v[{RES+2*i}:{RES+2*i+1}], v{vF}, s[36:39], s{sRf} offen offset:{1536*i}')
        else: k(f'buffer_store_dwordx2 v[{RES+2*i}:{RES+2*i+1}], v{vN}, s[36:39], s{sRn} offen offset:{96*i}')
        if stage == 3:
            S1, S2 = T + 8, T + 10
            if i == 0:
                k(f'v_pk_add_f32 v[{S1}:{S1+1}], v[{b}:{b+1}], v[{b+2}:{b+3}]')
                k(f'v_pk_mul_f32 v[{S2}:{S2+1}], v[{b}:{b+1}], v[{b}:{b+1}]')
            else:
                k(f'v_pk_add_f32 v[{S1}:{S1+1}], v[{S1}:{S1+1}], v[{b}:{b+1}]')
                k(f'v_pk_add_f32 v[{S1}:{S1+1}], v[{S1}:{S1+1}], v[{b+2}:{b+3}]')
                k(f'v_pk_fma_f32 v[{S2}:{S2+1}], v[{b}:{b+1}], v[{b}:{b+1}], v[{S2}:{S2+1}]')
            k(f'v_pk_fma_f32 v[{S2}:{S2+1}], v[{b+2}:{b+3}], v[{b+2}:{b+3}], v[{S2}:{S2+1}]')
    if stage == 3:
        S1, S2 = T + 8, T + 10
        k(f'''
v_add_f32 v{S1}, v{S1}, v{S1+1}
v_add_f32 v{S2}, v{S2}, v{S2+1}
v_mov_b32 v{S1+1}, v{S1}
v_mov_b32 v{S2+1}, v{S2}
s_nop 1
v_permlane32_swap_b32 v{S1}, v{S1+1}
v_permlane32_swap_b32 v{S2}, v{S2+1}
v_add_f32 v{S1}, v{S1}, v{S1+1}
v_add_f32 v{S2}, v{S2}, v{S2+1}
v_mov_b32 v{S1+1}, v{S1}
v_mov_b32 v{S2+1}, v{S2}
s_nop 1
v_permlane16_swap_b32 v{S1}, v{S1+1}
v_permlane16_swap_b32 v{S2}, v{S2+1}
v_add_f32 v{S1}, v{S1}, v{S1+1}
v_add_f32 v{S1+1}, v{S2}, v{S2+1}
v_mul_u32_u24 v{T}, 96, v{vTl}
s_and_b32 s{sTmp}, s{sW}, 1
s_lshl_b32 s{sTmp+1}, s{sTb}, 1
s_add_u32 s{sTmp}, s{sTmp}, s{sTmp+1}
s_mul_i32 s{sTmp}, s{sTmp}, {16*96}
s_mul_i32 s{sTmp+1}, s{sNt}, 3
s_lshr_b32 s{sTmp+2}, s{sW}, 1
s_add_u32 s{sTmp+1}, s{sTmp+1}, s{sTmp+2}
s_lshl_b32 s{sTmp+1}, s{sTmp+1}, 3
s_add_u32 s{sTmp}, s{sTmp}, s{sTmp+1}
s_add_u32 s{sTmp}, s{sTmp}, {WS_HS - WS_H}
s_mov_b64 exec, 0xffff
buffer_store_dwordx2 v[{S1}:{S1+1}], v{T}, s[36:39], s{sTmp} offen
''')
    pf.stamp('epi')
    if prof: k('s_waitcnt vmcnt(0)')
    pf.end(T)
    k.label(End)
    k('s_endpgm')
    return k, NW * 64, NW * 18432 + 16
```

```python
from gemm2 import *

WIN_NBUF = 8
L_CS = WIN_NBUF * 18432
L_RS = L_CS + 2048
WIN_LDS = L_RS + 4 * 512 + 16

def redg(k, regs, tmp):
    n = len(regs)
    for sw in ('v_permlane32_swap_b32', 'v_permlane16_swap_b32'):
        for i, r in enumerate(regs): k(f'v_mov_b32 v{tmp+i}, v{r}')
        if n < 3: k('s_nop 1')
        for i, r in enumerate(regs): k(f'{sw} v{r}, v{tmp+i}')
        for i, r in enumerate(regs): k(f'v_add_f32 v{r}, v{r}, v{tmp+i}')

def lnstats(k, s1, s2, n, r, nmr, t):
    k(f'''
v_mul_f32 v{s1}, {hexf(1.0/n)}, v{s1}
v_mul_f32 v{s2}, {hexf(1.0/n)}, v{s2}
v_fma_f32 v{s2}, -v{s1}, v{s1}, v{s2}
v_max_f32 v{s2}, 0, v{s2}
v_add_f32 v{s2}, {hexf(1e-5)}, v{s2}
v_rsq_f32 v{r}, v{s2}
s_nop 0
v_mul_f32 v{nmr}, v{s1}, v{r}
v_sub_f32 v{nmr}, 0, v{nmr}
''')

def gen_win(prof=False, PA=5, ramp=2, **kw):
    name = 'win_kernel'
    k = Kernel(name)
    vm = VM(k)
    End = f'L_end_{name}'
    NBUF = WIN_NBUF; NST = 18
    vLane, vTl, vG, vL16 = 1, 2, 3, 4
    vH1 = 5
    vDma = 6; vRd = 8
    vE = 12; vF = 13
    vR = 14
    vN = 16
    vRs = 18
    ACA = 20
    ACB = 92
    RP = 164
    CS = 180
    SS = 216
    T = 232
    def ACC(p, jt, tt): b = (ACA if p == 0 else ACB) + (jt * 2 + tt) * 4; return f'v[{b}:{b+3}]'
    def FA(st, jt): b = 144 + st * 36 + jt * 4; return f'a[{b}:{b+3}]'
    def Hf(ks, tt): b = (tt * 18 + ks) * 4; return f'a[{b}:{b+3}]'
    sW, sMt, sNt, sT0, sTmp, sM0, sKa, sKb, sEo, sZo = 40, 41, 42, 43, 44, 48, 49, 50, 51, 54
    sC1, sC2, sOne = 56, 58, 60
    sCnt = 62
    k(f's_cmp_ge_u32 s2, 256\ns_cbranch_scc1 {End}')
    pf = Prof(k, 4, prof); pf.start()
    load_ptrs(k)
    assign(k, 2, WIN_LDS - 16)
    k(f'''
v_and_b32 v{vLane}, 63, v0
v_lshrrev_b32 v{T}, 6, v0
v_and_b32 v{vTl}, 15, v0
v_readfirstlane_b32 s{sW}, v{T}
v_lshrrev_b32 v{vG}, 4, v{vLane}
v_lshlrev_b32 v{vL16}, 4, v{vLane}
v_add_u32 v{vH1}, {18*1024}, v{vL16}
s_and_b32 s{sTmp}, s2, 7
s_lshr_b32 s{sTmp+1}, s2, 3
s_and_b32 s{sNt}, s{sTmp}, 3
s_lshl_b32 s{sNt}, s{sNt}, 2
s_and_b32 s{sTmp+2}, s{sTmp+1}, 3
s_add_u32 s{sNt}, s{sNt}, s{sTmp+2}
s_lshr_b32 s{sMt}, s{sTmp}, 2
s_lshl_b32 s{sMt}, s{sMt}, 3
s_lshr_b32 s{sTmp+2}, s{sTmp+1}, 2
s_add_u32 s{sMt}, s{sMt}, s{sTmp+2}
s_lshl_b32 s{sT0}, s{sMt}, 7
s_lshl_b32 s{sTmp}, s{sW}, 5
s_add_u32 s{sT0}, s{sT0}, s{sTmp}
s_add_u32 s{sKa}, s{sNt}, 16
s_mul_i32 s{sKa}, s{sKa}, {18*9216}
s_lshr_b32 s{sKb}, s{sT0}, 4
s_mul_i32 s{sKb}, s{sKb}, {18*1024}
''')
    def mfma(S, ks2, st, jt, tt):
        p = S % 2; ks = 2 * (S // 2) + ks2
        c = '0' if ks == 0 else ACC(p, jt, tt)
        if p == 0: return f'v_mfma_f32_16x16x32_bf16 {ACC(p,jt,tt)}, {Hf(ks,tt)}, {FA(st,jt)}, {c}'
        return f'v_mfma_f32_16x16x32_bf16 {ACC(p,jt,tt)}, {FA(st,jt)}, {Hf(ks,tt)}, {c}'
    def loadsB(S):
        if S % 2: return []
        return [[(f'buffer_load_dwordx4 {Hf(S+i//2,i%2)}, v{vL16 if i%2 == 0 else vH1}, s[28:31], s{sKb} offen offset:{1024*(i//2)}', f'b{S}')] + ([f's_add_u32 s{sKb}, s{sKb}, 2048'] if i == 3 else []) for i in range(4)]
    G = Gemm(k, vm, NST, NBUF, (vDma, vRd, sM0, sKa), 24, FA, mfma, loadsB, PDA=PA, PDB=PA+1, ramp=ramp, **kw)
    D = 16 * 18 * 9216
    for S in range(1, 19):
        G.jump[S] = [f's_sub_u32 s{sKa}, s{sKa}, {D}'] if S % 2 else [f's_add_u32 s{sKa}, s{sKa}, {D + 18432}']
    G.setup(vL16, sW)
    k('s_waitcnt lgkmcnt(0)')
    srd_ws(k, 24, WS_WIN, 576 * 4608 * 2); srd_ws(k, 28, WS_H, 4 * MB)
    G.prologue()
    srd_ws(k, 32, WS_Z1, 21 * MB)
    k(f'''
v_min_u32 v{T}, 143, v0
v_cmp_gt_u32 vcc, 72, v{T}
v_subrev_u32 v{T+1}, 72, v{T}
v_mov_b32 v{T+3}, {2304*4}
v_cndmask_b32 v{T+1}, v{T+1}, v{T}, vcc
v_cndmask_b32 v{T+3}, 0, v{T+3}, vcc
v_lshl_add_u32 v{T+1}, v{T+1}, 3, v{T+3}
v_lshlrev_b32 v{T+2}, 3, v{T}
v_add_u32 v{T+2}, {L_CS}, v{T+2}
s_mul_i32 s{sTmp}, s{sNt}, 576
s_add_u32 s{sTmp}, s{sTmp}, {WS_CS - WS_H}
''')
    for i in range(6):
        k(f'buffer_load_dwordx2 v[{CS+2*i}:{CS+2*i+1}], v{T+1}, s[28:31], s{sTmp} offen')
        vm.issue('cs')
        if i < 5: k(f's_add_u32 s{sTmp}, s{sTmp}, {4608*4}')
    k(f'''
v_mul_u32_u24 v{T+3}, 96, v{vTl}
v_mul_u32_u24 v{T+4}, 24, v{vG}
v_add_u32 v{T+3}, v{T+3}, v{T+4}
s_mul_i32 s{sTmp}, s{sT0}, 96
s_add_u32 s{sTmp}, s{sTmp}, {WS_HS - WS_H}
''')
    for tt in range(2):
        for i in range(3):
            k(f'buffer_load_dwordx2 v[{CS+12+6*tt+2*i}:{CS+13+6*tt+2*i}], v{T+3}, s[28:31], s{sTmp} offen offset:{tt*16*96 + 8*i}')
            vm.issue('hs')
    c1 = -2.0 * math.log2(math.e) * math.sqrt(2.0 / math.pi)
    c2 = c1 * 0.044715
    k(f'''
v_lshlrev_b32 v{vE}, 3, v{vLane}
s_lshl_b32 s{sEo}, s{sMt}, 4
s_add_u32 s{sEo}, s{sEo}, s{sNt}
s_lshl_b32 s{sEo}, s{sEo}, 2
s_add_u32 s{sEo}, s{sEo}, s{sW}
s_mul_i32 s{sEo}, s{sEo}, 9216
s_add_u32 s{sEo+1}, s{sEo}, 4096
s_add_u32 s{sEo+2}, s{sEo}, 8192
v_lshrrev_b32 v{T}, 1, v{vG}
v_lshlrev_b32 v{T}, 8, v{T}
v_lshl_add_u32 v{T}, v{vTl}, 4, v{T}
v_and_b32 v{T+4}, 1, v{vG}
v_lshl_add_u32 v{vF}, v{T+4}, 3, v{T}
s_mul_i32 s{sZo}, s{sNt}, {32*18432}
s_lshl_b32 s{sTmp}, s{sMt}, 2
s_add_u32 s{sTmp}, s{sTmp}, s{sW}
s_mul_i32 s{sTmp}, s{sTmp}, 9216
s_add_u32 s{sZo}, s{sZo}, s{sTmp}
s_add_u32 s{sZo}, s{sZo}, {WS_Z2 - WS_Z1}
s_mov_b32 s{sC1}, {hexf(c1)}
s_mov_b32 s{sC1+1}, {hexf(c1)}
s_mov_b32 s{sC2}, {hexf(c2)}
s_mov_b32 s{sC2+1}, {hexf(c2)}
s_mov_b32 s{sOne}, 1.0
s_mov_b32 s{sOne+1}, 1.0
s_lshl_b32 s{sTmp}, s{sW}, 9
s_add_u32 s{sTmp}, s{sTmp}, {L_RS}
v_lshlrev_b32 v{vRs}, 2, v{vTl}
v_add_u32 v{vRs}, s{sTmp}, v{vRs}
v_lshlrev_b32 v{vRs+1}, 4, v{vG}
v_add_u32 v{vRs+1}, s{sTmp}, v{vRs+1}
''')
    pf.stamp('issue')
    G.start()
    pf.stamp('g0')
    def small():
        vm.wait('hs')
        for i in range(1, 6): k(f'v_pk_add_f32 v[{CS}:{CS+1}], v[{CS}:{CS+1}], v[{CS+2*i}:{CS+2*i+1}]')
        k(f'ds_write_b64 v{T+2}, v[{CS}:{CS+1}]')
        for tt in range(2):
            b = CS + 12 + 6 * tt
            k(f'v_pk_add_f32 v[{b}:{b+1}], v[{b}:{b+1}], v[{b+2}:{b+3}]\nv_pk_add_f32 v[{b}:{b+1}], v[{b}:{b+1}], v[{b+4}:{b+5}]')
        redg(k, [CS + 12, CS + 13, CS + 18, CS + 19], T + 8)
        for tt in range(2):
            lnstats(k, CS + 12 + 6 * tt, CS + 13 + 6 * tt, 576, vR + tt, vN + tt, T)
            k(f'ds_write_b32 v{vRs}, v{vR+tt} offset:{64*tt}\nds_write_b32 v{vRs}, v{vN+tt} offset:{128+64*tt}')
    def gelu_pair(a, t):
        return [f'v_pk_mul_f32 v[{t}:{t+1}], v[{a}:{a+1}], v[{a}:{a+1}]',
                f'v_pk_fma_f32 v[{t}:{t+1}], v[{t}:{t+1}], s[{sC2}:{sC2+1}], v[{T+22}:{T+23}]',
                f'v_pk_mul_f32 v[{t}:{t+1}], v[{t}:{t+1}], v[{a}:{a+1}]',
                f'v_exp_f32 v{t}, v{t}', f'v_exp_f32 v{t+1}, v{t+1}',
                f'v_pk_add_f32 v[{t}:{t+1}], v[{t}:{t+1}], s[{sOne}:{sOne+1}]',
                f'v_rcp_f32 v{t}, v{t}', f'v_rcp_f32 v{t+1}, v{t+1}',
                f'v_pk_mul_f32 v[{a}:{a+1}], v[{a}:{a+1}], v[{t}:{t+1}]']
    def interleave(seqs):
        out = []
        for i in range(max(len(s) for s in seqs)):
            for s in seqs:
                if i < len(s): out.append(s[i])
        return out
    for S in range(18):
        G.stage(S)
        if S == 2: small()
    pf.stamp('passA')
    k(f'v_lshlrev_b32 v{T}, 2, v{vTl}\nv_mov_b32 v{T+22}, s{sC1}\nv_mov_b32 v{T+23}, s{sC1}')
    for jt in range(9): k(f'ds_read_b32 v{CS+jt}, v{T} offset:{L_CS % 65536 + 64*jt}' if False else f'ds_read_b32 v{CS+jt}, v{T+1} offset:{64*jt}') if jt else k(f'v_add_u32 v{T+1}, {L_CS}, v{T}\nds_read_b32 v{CS}, v{T+1}')
    for tt in range(2):
        k(f'ds_read_b128 v[{RP+4*tt}:{RP+4*tt+3}], v{vRs+1} offset:{64*tt}')
        k(f'ds_read_b128 v[{RP+8+4*tt}:{RP+8+4*tt+3}], v{vRs+1} offset:{128+64*tt}')
    k('s_waitcnt lgkmcnt(0)')
    for jt in range(9):
        cp = CS + (jt & ~1)
        sel = 'op_sel_hi:[1,0]' if jt % 2 == 0 else 'op_sel:[0,1] op_sel_hi:[1,1]'
        seqs = []
        for tt in range(2):
            for h in range(2):
                a = ACA + (jt * 2 + tt) * 4 + 2 * h
                t = T + 2 * (tt * 2 + h)
                r = RP + 4 * tt + 2 * h
                s1 = SS + 4 * tt + 2 * h; s2 = SS + 8 + 4 * tt + 2 * h
                sq = [f'v_pk_mul_f32 v[{t}:{t+1}], v[{r+8}:{r+9}], v[{cp}:{cp+1}] {sel}',
                      f'v_pk_fma_f32 v[{a}:{a+1}], v[{a}:{a+1}], v[{r}:{r+1}], v[{t}:{t+1}]'] + gelu_pair(a, t)
                if jt == 0:
                    sq += [f'v_pk_mul_f32 v[{s2}:{s2+1}], v[{a}:{a+1}], v[{a}:{a+1}]', f'v_pk_mul_f32 v[{s1}:{s1+1}], v[{a}:{a+1}], s[{sOne}:{sOne+1}]']
                else:
                    sq += [f'v_pk_fma_f32 v[{s2}:{s2+1}], v[{a}:{a+1}], v[{a}:{a+1}], v[{s2}:{s2+1}]', f'v_pk_add_f32 v[{s1}:{s1+1}], v[{s1}:{s1+1}], v[{a}:{a+1}]']
                seqs.append(sq)
        for x in interleave(seqs): k(x)
    src, dst = SS, CS
    k('s_nop 1')
    for sh in (1, 2, 4, 8):
        for i in range(16):
            k(f'v_add_f32_dpp v{dst+i}, v{src+i}, v{src+i} row_ror:{sh} row_mask:0xf bank_mask:0xf')
        src, dst = dst, src
    k(f'''
s_lshl_b32 s{sTmp}, s{sT0}, 7
s_lshl_b32 s{sTmp+1}, s{sNt}, 3
s_add_u32 s{sTmp}, s{sTmp}, s{sTmp+1}
s_add_u32 s{sTmp}, s{sTmp}, {WS_ST - WS_Z1}
v_lshlrev_b32 v{T}, 9, v{vG}
''')
    for i in range(8): k(f'v_mov_b32 v{CS+2*i}, v{SS+i}\nv_mov_b32 v{CS+2*i+1}, v{SS+8+i}')
    k(f's_mov_b32 exec_lo, 0x00010001\ns_mov_b32 exec_hi, 0x00010001')
    for i in range(8):
        k(f'buffer_store_dwordx2 v[{CS+2*i}:{CS+2*i+1}], v{T}, s[32:35], s{sTmp} offen offset:{(16*(i//4) + i%4)*128} sc0 sc1')
    k('s_mov_b64 exec, -1')
    pf.stamp('epiA')
    PS = RP
    k(f'''
v_lshlrev_b32 v{vH1}, 7, v{vTl}
v_lshl_add_u32 v{vH1}, v{vG}, 5, v{vH1}
s_lshl_b32 s{sCnt}, s{sT0}, 7
s_add_u32 s{sCnt}, s{sCnt}, {WS_ST - WS_Z1}
''')
    def psloads():
        for tt in range(2):
            for i in range(2):
                k(f'buffer_load_dwordx4 v[{PS+8*tt+4*i}:{PS+8*tt+4*i+3}], v{vH1}, s[32:35], s{sCnt} offen offset:{tt*2048 + 16*i} sc0 sc1')
    pf.stamp('passB')
    PSJ = 5
    k(f'v_lshlrev_b32 v{T}, 4, v{vG}\nv_add_u32 v{T}, {L_CS + 576}, v{T}')
    for jt in range(9): k(f'ds_read_b128 v[{CS+4*jt}:{CS+4*jt+3}], v{T} offset:{64*jt}')
    k('s_waitcnt lgkmcnt(0)')
    for jt in range(9):
        seqs = []
        for tt in range(2):
            sel = 'op_sel_hi:[1,0]' if tt == 0 else 'op_sel:[0,1] op_sel_hi:[1,1]'
            sel3 = 'op_sel_hi:[1,0,1]' if tt == 0 else 'op_sel:[0,1,0] op_sel_hi:[1,1,1]'
            for h in range(2):
                a = ACB + (jt * 2 + tt) * 4 + 2 * h
                t = T + 2 * (tt * 2 + h)
                cp = CS + 4 * jt + 2 * h
                sq = [f'v_pk_mul_f32 v[{t}:{t+1}], v[{cp}:{cp+1}], v[{vN}:{vN+1}] {sel}',
                      f'v_pk_fma_f32 v[{a}:{a+1}], v[{a}:{a+1}], v[{vR}:{vR+1}], v[{t}:{t+1}] {sel3}'] + gelu_pair(a, t)
                sq += [f'v_cvt_pk_bf16_f32 v{T+8+4*(jt%2)+2*tt+h}, v{a}, v{a+1}']
                seqs.append(sq)
        for x in interleave(seqs): k(x)
        if jt == PSJ: psloads()
        for tt in range(2):
            d = T + 8 + 4 * (jt % 2) + 2 * tt
            o = (jt * 2 + tt) * 512
            k(f'buffer_store_dwordx2 v[{d}:{d+1}], v{vE}, s[32:35], s{sEo + o//4096} offen offset:{o%4096}')
    pf.stamp('epiB')
    k(f's_mov_b32 s{sTmp+1}, 0\ns_waitcnt vmcnt({2*(9-PSJ)})\ns_branch L_win_chk')
    k.label('L_win_spin')
    k('s_sleep 2')
    psloads()
    k(f's_add_u32 s{sTmp+1}, s{sTmp+1}, 1\ns_waitcnt vmcnt(0)')
    k.label('L_win_chk')
    k(f'''
v_min_f32 v{T}, v{PS+1}, v{PS+3}
v_min_f32 v{T+1}, v{PS+5}, v{PS+7}
v_min_f32 v{T+2}, v{PS+9}, v{PS+11}
v_min_f32 v{T+3}, v{PS+13}, v{PS+15}
v_min_f32 v{T}, v{T}, v{T+1}
v_min_f32 v{T+2}, v{T+2}, v{T+3}
v_min_f32 v{T}, v{T}, v{T+2}
v_cmp_gt_f32 vcc, 0, v{T}
s_cmp_ge_u32 s{sTmp+1}, 0x100000
s_cbranch_scc1 L_win_go
s_cbranch_vccnz L_win_spin
L_win_go:
''')
    for i in range(16): k(f'v_mov_b32 v{CS+i}, v{PS+i}')
    pf.stamp('spin')
    for tt in range(2):
        b = CS + 8 * tt
        k(f'v_pk_add_f32 v[{b}:{b+1}], v[{b}:{b+1}], v[{b+2}:{b+3}]\nv_pk_add_f32 v[{b+4}:{b+5}], v[{b+4}:{b+5}], v[{b+6}:{b+7}]\nv_pk_add_f32 v[{b}:{b+1}], v[{b}:{b+1}], v[{b+4}:{b+5}]')
    redg(k, [CS, CS + 1, CS + 8, CS + 9], T + 8)
    for tt in range(2):
        lnstats(k, CS + 8 * tt, CS + 1 + 8 * tt, 2304, vR + tt, vN + tt, T)
        k(f'ds_write_b32 v{vRs}, v{vR+tt} offset:{256+64*tt}\nds_write_b32 v{vRs}, v{vN+tt} offset:{384+64*tt}')
    k('s_waitcnt lgkmcnt(0)')
    for tt in range(2):
        k(f'ds_read_b128 v[{RP+4*tt}:{RP+4*tt+3}], v{vRs+1} offset:{256+64*tt}')
        k(f'ds_read_b128 v[{RP+8+4*tt}:{RP+8+4*tt+3}], v{vRs+1} offset:{384+64*tt}')
    k(f's_add_u32 s{sZo+1}, s{sZo}, 4096\ns_add_u32 s{sTmp}, s{sZo}, 8192\ns_waitcnt lgkmcnt(0)')
    for jt in range(9):
        for tt in range(2):
            a = ACA + (jt * 2 + tt) * 4
            r = RP + 4 * tt
            d = T + 2 * ((jt * 2 + tt) % 4)
            o = jt * 1024 + tt * 512
            so = [sZo, sZo + 1, sTmp][o // 4096]
            k(f'''
v_pk_fma_f32 v[{a}:{a+1}], v[{a}:{a+1}], v[{r}:{r+1}], v[{r+8}:{r+9}]
v_pk_fma_f32 v[{a+2}:{a+3}], v[{a+2}:{a+3}], v[{r+2}:{r+3}], v[{r+10}:{r+11}]
v_cvt_pk_bf16_f32 v{d}, v{a}, v{a+1}
v_cvt_pk_bf16_f32 v{d+1}, v{a+2}, v{a+3}
buffer_store_dwordx2 v[{d}:{d+1}], v{vF}, s[32:35], s{so} offen offset:{o%4096}
''')
    pf.stamp('norm')
    if prof: k('s_waitcnt vmcnt(0)')
    pf.end(T)
    k.label(End)
    k('s_endpgm')
    return k
```

```python
from gemm2 import *

WSP_LDS = 8 * 18432 + 16

def gen_wsp3(prof=False, **kw):
    name = 'wsp_kernel'
    k = Kernel(name)
    vm = VM(k)
    End = f'L_end_{name}'
    NBUF = 8; NST = 32
    vLane, vTl, vG, vL16 = 1, 2, 3, 4
    vDma = 6; vRd = 8
    vE = 12; vF = 13
    vBias = 14
    BR = 20
    AC = 148
    T = 220
    Z1 = BR
    def ACC(jt, tt): b = AC + (jt * 2 + tt) * 4; return f'v[{b}:{b+3}]'
    def FA(st, jt): b = st * 36 + jt * 4; return f'a[{b}:{b+3}]'
    def Bf(S, ks2, tt): b = BR + (S % NBUF) * 16 + (ks2 * 2 + tt) * 4; return f'v[{b}:{b+3}]'
    sW, sFt, sTt, sT0, sTmp, sM0, sKa, sEo, sKb, sUo = 40, 41, 42, 43, 44, 48, 49, 51, 54, 55
    k(f's_cmp_ge_u32 s2, 256\ns_cbranch_scc1 {End}')
    pf = Prof(k, 6, prof); pf.start()
    load_ptrs(k)
    assign(k, 3, WSP_LDS - 16)
    k(f'''
v_and_b32 v{vLane}, 63, v0
v_lshrrev_b32 v{T}, 6, v0
v_and_b32 v{vTl}, 15, v0
v_readfirstlane_b32 s{sW}, v{T}
v_lshrrev_b32 v{vG}, 4, v{vLane}
v_lshlrev_b32 v{vL16}, 4, v{vLane}
s_and_b32 s{sTmp}, s2, 7
s_lshr_b32 s{sTmp+1}, s2, 3
s_and_b32 s{sFt}, s{sTmp}, 3
s_lshl_b32 s{sFt}, s{sFt}, 2
s_and_b32 s{sTmp+2}, s{sTmp+1}, 3
s_add_u32 s{sFt}, s{sFt}, s{sTmp+2}
s_lshr_b32 s{sTt}, s{sTmp}, 2
s_lshl_b32 s{sTt}, s{sTt}, 3
s_lshr_b32 s{sTmp+2}, s{sTmp+1}, 2
s_add_u32 s{sTt}, s{sTt}, s{sTmp+2}
s_lshl_b32 s{sT0}, s{sTt}, 7
s_lshl_b32 s{sTmp}, s{sW}, 5
s_add_u32 s{sT0}, s{sT0}, s{sTmp}
s_mul_i32 s{sKa}, s{sFt}, {32*18432}
s_lshl_b32 s{sKb}, s{sTt}, 2
s_add_u32 s{sKb}, s{sKb}, s{sW}
s_lshl_b32 s{sKb}, s{sKb}, 17
''')
    def mfma(S, ks2, st, jt, tt):
        c = '0' if (S == 0 and ks2 == 0) else ACC(jt, tt)
        return f'v_mfma_f32_16x16x32_bf16 {ACC(jt,tt)}, {FA(st,jt)}, {Bf(S,ks2,tt)}, {c}'
    def loadsB(S):
        return [[(f'buffer_load_dwordx4 {Bf(S,i//2,i%2)}, v{vL16}, s[28:31], s{sKb} offen offset:{1024*i}', f'b{S}')] + ([f's_add_u32 s{sKb}, s{sKb}, 4096'] if i == 3 else []) for i in range(4)]
    G = Gemm(k, vm, NST, NBUF, (vDma, vRd, sM0, sKa), 24, FA, mfma, loadsB, **kw)
    G.setup(vL16, sW)
    k('s_waitcnt lgkmcnt(0)')
    srd_ws(k, 24, WS_Z2, SZ_Z); srd_ws(k, 28, WS_WSP, 2048 * 2048 * 2)
    G.prologue()
    srd_ws(k, 32, WS_Z1, SZ_Z); srd_ws(k, 36, WS_U, SZ_Z)
    k(f'''
v_lshlrev_b32 v{vE}, 3, v{vLane}
s_lshl_b32 s{sEo}, s{sTt}, 4
s_add_u32 s{sEo}, s{sEo}, s{sFt}
s_lshl_b32 s{sEo}, s{sEo}, 2
s_add_u32 s{sEo}, s{sEo}, s{sW}
s_mul_i32 s{sEo}, s{sEo}, 9216
s_add_u32 s{sEo+1}, s{sEo}, 4096
s_add_u32 s{sEo+2}, s{sEo}, 8192
v_lshrrev_b32 v{T}, 1, v{vG}
v_lshlrev_b32 v{T}, 8, v{T}
v_lshl_add_u32 v{T}, v{vTl}, 4, v{T}
v_and_b32 v{T+1}, 1, v{vG}
v_lshl_add_u32 v{vF}, v{T+1}, 3, v{T}
s_lshr_b32 s{sUo}, s{sT0}, 4
s_mul_i32 s{sUo}, s{sUo}, {72*1024}
s_mul_i32 s{sTmp}, s{sFt}, {9*512}
s_add_u32 s{sUo}, s{sUo}, s{sTmp}
s_add_u32 s{sUo+1}, s{sUo}, {72*1024}
s_add_u32 s{sUo+2}, s{sUo}, 4096
s_add_u32 s{sUo+3}, s{sUo+1}, 4096
v_lshlrev_b32 v{T}, 1, v{vTl}
s_lshl_b32 s{sTmp}, s{sT0}, 1
''')
    pf.stamp('issue')
    G.start()
    pf.stamp('g0')
    for S in range(NST):
        ex = []
        if S in (27, 28, 29):
            if S == 27:
                ex.append([f's_mov_b32 s28, s16', 's_mov_b32 s29, s17', 's_mov_b32 s30, 4096', (f'buffer_load_ushort v{vBias}, v{T}, s[28:31], s{sTmp} offen', 'z')])
                ex.append([(f'buffer_load_ushort v{vBias+1}, v{T}, s[28:31], s{sTmp} offen offset:32', 'z')])
            for jt in range(3 * (S - 27), 3 * (S - 27) + 3):
                for tt in range(2):
                    d = Z1 + (jt * 2 + tt) * 2
                    o = (jt * 2 + tt) * 512
                    ex.append([(f'buffer_load_dwordx2 v[{d}:{d+1}], v{vE}, s[32:35], s{sEo + o//4096} offen offset:{o%4096}', 'z')])
        G.stage(S, extra1=ex)
        if S == 24: pf.stamp('loop')
    pf.stamp('tail')
    vm.wait('z')
    pf.stamp('zwait')
    k(f'v_lshlrev_b32 v{vBias}, 16, v{vBias}\nv_lshlrev_b32 v{vBias+1}, 16, v{vBias+1}\ns_nop 5')
    for jt in range(9):
        for tt in range(2):
            a = AC + (jt * 2 + tt) * 4
            z = Z1 + (jt * 2 + tt) * 2
            t = T + 4 * ((jt * 2 + tt) % 4)
            sel = 'op_sel_hi:[1,0]' if tt == 0 else 'op_sel:[0,1] op_sel_hi:[1,1]'
            k(f'''
v_lshlrev_b32 v{t}, 16, v{z}
v_and_b32 v{t+1}, 0xffff0000, v{z}
v_lshlrev_b32 v{t+2}, 16, v{z+1}
v_and_b32 v{t+3}, 0xffff0000, v{z+1}
v_pk_add_f32 v[{a}:{a+1}], v[{a}:{a+1}], v[{vBias}:{vBias+1}] {sel}
v_pk_add_f32 v[{a+2}:{a+3}], v[{a+2}:{a+3}], v[{vBias}:{vBias+1}] {sel}
v_pk_mul_f32 v[{a}:{a+1}], v[{a}:{a+1}], v[{t}:{t+1}]
v_pk_mul_f32 v[{a+2}:{a+3}], v[{a+2}:{a+3}], v[{t+2}:{t+3}]
v_cvt_pk_bf16_f32 v{z}, v{a}, v{a+1}
v_cvt_pk_bf16_f32 v{z+1}, v{a+2}, v{a+3}
buffer_store_dwordx2 v[{z}:{z+1}], v{vF}, s[36:39], s{sUo + tt + (2 if jt == 8 else 0)} offen offset:{(jt%8)*512}
''')
    pf.stamp('epi')
    if prof: k('s_waitcnt vmcnt(0)')
    pf.end(T)
    k.label(End)
    k('s_endpgm')
    return k
```

```python
from common2 import *

L_K1 = 0
L_K2 = 65536
L_V = 73728
L_ONES = 147456
ATT_LDS = 151552 + 16

def gen_attn(prof=False, force_fb=False, PRIO=(7, 2)):
    name = 'attn_kernel'
    k = Kernel(name)
    End = f'L_end_{name}'
    vLane, vL16, vK2o = 1, 2, 3
    vK1a, vK2a, vVa, vVs = 4, 5, 6, 7
    Q1, Q2 = 8, 12
    KA = [16, 20]; KB = [24, 26]
    VA = [28, 36]
    vB = 44
    S = [48, 64]
    P = 80
    O = 96
    T = 112
    RT = 120
    M = 140
    sW, sHead, sQb, sTmp, sKb, sVb, sCnt = 40, 41, 42, 44, 46, 47, 48
    sM = 52; sS = 58
    k(f's_cmp_ge_u32 s2, 256\ns_cbranch_scc1 {End}')
    pf = Prof(k, 2, prof); pf.start()
    load_ptrs(k)
    assign(k, 0, ATT_LDS - 16)
    k(f'''
v_and_b32 v{vLane}, 63, v0
v_lshrrev_b32 v{T}, 6, v0
v_lshlrev_b32 v{vL16}, 4, v{vLane}
v_readfirstlane_b32 s{sW}, v{T}
s_and_b32 s{sHead}, s2, 7
s_lshl_b32 s{sHead}, s{sHead}, 2
s_lshr_b32 s{sTmp}, s2, 3
s_and_b32 s{sTmp}, s{sTmp}, 3
s_add_u32 s{sHead}, s{sHead}, s{sTmp}
s_lshr_b32 s{sQb}, s2, 5
s_mul_i32 s{sKb}, s{sHead}, 98304
s_mul_i32 s{sVb}, s{sHead}, 73728
s_lshl_b32 s{sTmp}, s{sQb}, 3
s_add_u32 s{sTmp}, s{sTmp}, s{sW}
s_mul_i32 s{sTmp}, s{sTmp}, 1536
s_add_u32 s{sCnt}, s{sTmp}, s{sKb}
s_add_u32 s{sKb}, s{sKb}, {WS_K}
s_add_u32 s{sVb}, s{sVb}, {WS_V}
v_and_b32 v{T}, 31, v{vLane}
v_lshlrev_b32 v{T}, 4, v{T}
v_lshrrev_b32 v{T+1}, 5, v{vLane}
v_mul_u32_u24 v{vK2o}, 1536, v{T+1}
v_add_u32 v{vK2o}, v{vK2o}, v{T}
v_add_u32 v{vK2o}, 1024, v{vK2o}
; K1 slots
s_lshl_b32 s{sM}, s{sW}, 11
s_add_u32 s{sM+1}, s{sM}, 1024
s_mul_i32 s{sS}, s{sW}, 3072
s_add_u32 s{sS}, s{sS}, s{sKb}
s_add_u32 s{sS+1}, s{sS}, 1536
; K2 slot
s_lshl_b32 s{sM+2}, s{sW}, 8
s_add_u32 s{sM+2}, s{sM+2}, {L_K2}
s_mov_b32 s{sS+2}, s{sS}
; V slots
s_lshl_b32 s{sTmp}, s{sW}, 10
s_add_u32 s{sM+3}, s{sTmp}, {L_V}
s_add_u32 s{sS+3}, s{sTmp}, s{sVb}
s_add_u32 s{sM+4}, s{sM+3}, 8192
s_add_u32 s{sS+4}, s{sS+3}, 8192
s_cmp_lt_u32 s{sW}, 2
s_cselect_b32 s{sTmp}, 8192, 0
s_add_u32 s{sM+5}, s{sM+4}, s{sTmp}
s_add_u32 s{sS+5}, s{sS+4}, s{sTmp}
s_waitcnt lgkmcnt(0)
''')
    srd_ws(k, 24, WS_Q, 9 * MB)
    incm = [16384, 16384, 2048, 18432, 18432, 18432]
    incs = [16 * 1536, 16 * 1536, 16 * 1536, 18432, 18432, 18432]
    def ld(i):
        k(f's_mov_b32 m0, s{sM+i}\ns_add_u32 s{sM+i}, s{sM+i}, {incm[i]}')
        if i == 2: k(f'buffer_load_dword v{vK2o}, s[24:27], s{sS+i} offen lds')
        else: k(f'buffer_load_dwordx4 v{vL16}, s[24:27], s{sS+i} offen lds')
        k(f's_add_u32 s{sS+i}, s{sS+i}, {incs[i]}')
    ld(0); ld(2); ld(3)
    k(f'''
buffer_load_dwordx4 v[{Q1}:{Q1+3}], v{vL16}, s[24:27], s{sCnt} offen
buffer_load_dword v{Q2}, v{T}, s[24:27], s{sCnt} offen offset:1024
''')
    ld(1); ld(4); ld(5)
    srd_in(k, 32, 5, 2048 * 2048 * 2)
    k(f'''
v_lshrrev_b32 v{T}, 3, v{vLane}
v_and_b32 v{T+1}, 7, v{vLane}
v_lshlrev_b32 v{T+2}, 12, v{T}
v_lshl_add_u32 v{T+2}, v{T+1}, 4, v{T+2}
s_lshl_b32 s{sTmp}, s2, 15
s_lshl_b32 s{sTmp+1}, s{sW}, 9
s_add_u32 s{sTmp}, s{sTmp}, s{sTmp+1}
''')
    k(f'v_mov_b32 v{RT+17}, v{T+2}\ns_mov_b32 s51, s{sTmp}')
    srd_ws(k, 28, WS_O, SZ_X)
    srd_ws(k, 36, WS_WSP, 2048 * 2048 * 2)
    k(f'''
v_lshrrev_b32 v{T+2}, 2, v{T+1}
v_lshlrev_b32 v{T+2}, 11, v{T+2}
v_and_b32 v{T+1}, 3, v{T+1}
v_lshl_add_u32 v{T+2}, v{T+1}, 8, v{T+2}
v_lshl_add_u32 v{RT+16}, v{T}, 4, v{T+2}
s_lshr_b32 s50, s2, 2
s_lshl_b32 s50, s50, 17
s_bfe_u32 s{sTmp}, s2, 0x10001
s_lshl_b32 s{sTmp}, s{sTmp}, 10
s_add_u32 s50, s50, s{sTmp}
s_and_b32 s{sTmp}, s2, 1
s_lshl_b32 s{sTmp}, s{sTmp}, 7
s_add_u32 s50, s50, s{sTmp}
s_lshl_b32 s{sTmp}, s{sW}, 14
s_add_u32 s50, s50, s{sTmp}
''')
    pf.stamp('issue')
    k(f'''
v_mov_b32 v{T+2}, 0x3f803f80
v_mov_b32 v{T+3}, 0x3f803f80
v_lshlrev_b32 v{T+4}, 3, v0
v_add_u32 v{T+4}, {L_ONES}, v{T+4}
ds_write_b64 v{T+4}, v[{T+2}:{T+3}]
''')
    for r in (Q2+1, KB[0]+1, KB[1]+1): k(f'v_mov_b32 v{r}, 0')
    for i in range(16): k(f'v_mov_b32 v{O+i}, 0')
    k(f'''
v_mov_b32 v{vK1a}, v{vL16}
v_and_b32 v{T}, 31, v{vLane}
v_lshlrev_b32 v{vK2a}, 2, v{T}
v_add_u32 v{vK2a}, {L_K2}, v{vK2a}
v_lshrrev_b32 v{T+1}, 5, v{vLane}
v_mul_u32_u24 v{T+1}, 288, v{T+1}
v_lshl_add_u32 v{T+1}, v{T}, 4, v{T+1}
v_add_u32 v{T+1}, {L_V}, v{T+1}
v_cmp_gt_u32 vcc, 18, v{T}
v_mov_b32 v{T+2}, {L_ONES}
v_mov_b32 v{T+3}, 2304
v_cndmask_b32 v{vVa}, v{T+2}, v{T+1}, vcc
v_cndmask_b32 v{vVs}, 0, v{T+3}, vcc
v_cmp_gt_u32 vcc, 32, v{vLane}
v_mov_b32 v{vB}, v{vK1a}
v_mov_b32 v{vB+1}, v{vK2a}
v_mov_b32 v{vB+2}, v{vVa}
s_mov_b32 s{sCnt}, 3
s_waitcnt vmcnt(3)
v_cndmask_b32 v{Q2}, 0, v{Q2}, vcc
s_waitcnt vmcnt(0) lgkmcnt(0)
s_barrier
''')
    pf.stamp('c0')
    def rdK(b, off):
        k(f'ds_read_b128 v[{KA[b]}:{KA[b]+3}], v{vK1a} offset:{off*1024}')
        k(f'ds_read_b32 v{KB[b]}, v{vK2a} offset:{off*128}')
    def rdV(b, off):
        k(f'ds_read_b128 v[{VA[b]}:{VA[b]+3}], v{vVa} offset:{off*1152}')
        k(f'ds_read_b128 v[{VA[b]+4}:{VA[b]+7}], v{vVa} offset:{off*1152+576}')
    def A1(b, c='0'):
        s = S[b]
        k(f'v_mfma_f32_32x32x16_bf16 v[{s}:{s+15}], v[{KA[b]}:{KA[b]+3}], v[{Q1}:{Q1+3}], {c}')
    def A2(b):
        s = S[b]
        k(f'v_mfma_f32_32x32x8bf16_1k v[{s}:{s+15}], v[{KB[b]}:{KB[b]+1}], v[{Q2}:{Q2+1}], v[{s}:{s+15}]')
    def A(b, c='0'): A1(b, c); A2(b)
    def C(b, h):
        k(f'v_mfma_f32_32x32x16_bf16 v[{O}:{O+15}], v[{VA[b]+4*h}:{VA[b]+4*h+3}], v[{P+4*h}:{P+4*h+3}], v[{O}:{O+15}]')
    def E(b, i0):
        for i in range(i0, i0 + 4): k(f'v_exp_f32 v{S[b]+i}, v{S[b]+i}')
    def pre(c='0'):
        rdK(0, 0); rdK(1, 1)
        for i in range(8): k(f'v_mov_b32 v{P+i}, 0\nv_mov_b32 v{VA[1]+i}, 0')
        k('s_waitcnt lgkmcnt(2)')
        A(0, c)
        rdV(0, 0); rdK(0, 2)
        k('s_nop 7')
    def tile(b, o, c, l0, l1):
        k('s_waitcnt lgkmcnt(4)')
        C(1 - b, 0); E(b, 0)
        if l0: l0()
        C(1 - b, 1); E(b, 4)
        rdV(1 - b, o + 1)
        A1(1 - b, c); E(b, 8)
        if l1: l1()
        A2(1 - b)
        rdK(1 - b, o + 3)
        E(b, 12)
        for i in range(8): k(f'v_cvt_pk_bf16_f32 v{P+i}, v{S[b]+2*i}, v{S[b]+2*i+1}')
    def body(ls=(), c='0'):
        ls = list(ls) + [None] * 4
        tile(0, 0, c, ls[0], ls[1])
        tile(1, 1, c, ls[2], ls[3])
        k(f'''
v_add_u32 v{vK1a}, 2048, v{vK1a}
v_add_u32 v{vK2a}, 256, v{vK2a}
v_add_u32 v{vVa}, v{vVs}, v{vVa}
''')
    def post():
        k('s_waitcnt lgkmcnt(0)')
        C(1, 0); C(1, 1)
    pre()
    order = [0, 2, 3, 1, 4, 5] * 3
    for i in range(6):
        body([(lambda j=j: ld(j)) for j in order[4*i:4*i+4]])
    pf.stamp('loop1')
    k('s_waitcnt vmcnt(0)\ns_barrier')
    for i in range(4):
        k(f'buffer_load_dwordx4 v[{RT+4*i}:{RT+4*i+3}], v{RT+17}, s[32:35], s51 offen offset:{128*i}')
    pf.stamp('wait')
    for part, n in enumerate((8, 18)):
        k(f's_mov_b32 s{sCnt}, {n}')
        if PRIO: k(f's_setprio {3 - part}')
        k.label(f'L_att2{part}')
        body()
        if PRIO and part == 1:
            for j, th in enumerate(PRIO):
                k(f's_cmp_lg_u32 s{sCnt}, {th+1}\ns_cbranch_scc1 L_att_p{j}\ns_setprio {1-j}')
                k.label(f'L_att_p{j}')
        k(f's_sub_u32 s{sCnt}, s{sCnt}, 1\ns_cmp_lg_u32 s{sCnt}, 0\ns_cbranch_scc1 L_att2{part}')
        if part == 0:
            k('s_waitcnt vmcnt(0)')
            for i in range(4):
                k(f'buffer_store_dwordx4 v[{RT+4*i}:{RT+4*i+3}], v{RT+16}, s[36:39], s50 offen')
                if i < 3: k('s_add_u32 s50, s50, 4096')
    post()
    pf.stamp('loop2')
    k(f'''
s_waitcnt lgkmcnt(0)
s_nop 15
v_mov_b32 v{T}, v{O+10}
v_mov_b32 v{T+1}, v{O+10}
s_mov_b32 s{sTmp}, {hexf(2.0 ** -60) if not force_fb else hexf(2.0**100)}
s_mov_b32 s{sTmp+1}, {hexf(2.0 ** 60)}
v_permlane32_swap_b32 v{T}, v{T+1}
s_nop 1
v_cmp_le_f32 vcc, s{sTmp}, v{T}
v_cmp_ge_f32 s[{sTmp+2}:{sTmp+3}], s{sTmp+1}, v{T}
s_and_b64 vcc, vcc, s[{sTmp+2}:{sTmp+3}]
s_cmp_eq_u64 vcc, exec
s_cbranch_scc0 L_att_fb
''')
    k.label('L_att_epi')
    k(f'''
v_rcp_f32 v{T}, v{T}
s_lshl_b32 s{sTmp}, s{sQb}, 4
s_lshl_b32 s{sTmp+1}, s{sW}, 1
s_add_u32 s{sTmp}, s{sTmp}, s{sTmp+1}
s_mul_i32 s{sTmp}, s{sTmp}, 18432
s_lshl_b32 s{sTmp+1}, s{sHead}, 9
s_add_u32 s{sTmp+1}, s{sTmp+1}, s{sTmp}
s_lshr_b32 s{sTmp+2}, s{sHead}, 2
s_lshl_b32 s{sTmp+2}, s{sTmp+2}, 8
s_add_u32 s{sTmp}, s{sTmp}, s{sTmp+2}
s_and_b32 s{sTmp+2}, s{sHead}, 3
s_lshl_b32 s{sTmp+2}, s{sTmp+2}, 2
s_add_u32 s{sTmp}, s{sTmp}, s{sTmp+2}
s_add_u32 s{sTmp}, s{sTmp}, 16384
v_bfe_u32 v{T+2}, v{vLane}, 4, 1
v_mul_u32_u24 v{T+2}, 18432, v{T+2}
v_and_b32 v{T+3}, 15, v{vLane}
v_lshl_add_u32 v{T+2}, v{T+3}, 4, v{T+2}
v_lshrrev_b32 v{T+3}, 5, v{vLane}
v_lshl_add_u32 v{T+2}, v{T+3}, 8, v{T+2}
''')
    for i in range(10): k(f'v_mul_f32 v{O+i}, v{O+i}, v{T}')
    for i in range(5): k(f'v_cvt_pk_bf16_f32 v{P+i}, v{O+2*i}, v{O+2*i+1}')
    k(f'''
buffer_store_dwordx4 v[{P}:{P+3}], v{T+2}, s[28:31], s{sTmp+1} offen
s_mov_b32 exec_hi, 0
buffer_store_dword v{P+4}, v{T+2}, s[28:31], s{sTmp} offen
''')
    pf.stamp('epi')
    if prof:
        k('s_waitcnt vmcnt(0)')
        pf.end(T)
    k(f's_branch {End}')
    k.label('L_att_fb')
    k(f'''
v_mov_b32 v{vK1a}, v{vB}
v_mov_b32 v{vK2a}, v{vB+1}
v_mov_b32 v{M}, 0xff800000
s_mov_b32 s{sCnt}, 64
''')
    k.label('L_att_fb1')
    rdK(0, 0)
    k(f'v_add_u32 v{vK1a}, 1024, v{vK1a}\nv_add_u32 v{vK2a}, 128, v{vK2a}\ns_waitcnt lgkmcnt(0)')
    A(0)
    k('s_nop 15')
    for i in range(8): k(f'v_max3_f32 v{M}, v{S[0]+2*i}, v{S[0]+2*i+1}, v{M}')
    k(f's_sub_u32 s{sCnt}, s{sCnt}, 1\ns_cmp_lg_u32 s{sCnt}, 0\ns_cbranch_scc1 L_att_fb1')
    k(f'''
v_mov_b32 v{T}, v{M}
v_mov_b32 v{T+1}, v{M}
s_nop 1
v_permlane32_swap_b32 v{T}, v{T+1}
s_nop 1
v_max_f32 v{T}, v{T}, v{T+1}
v_mov_b32 v{vK1a}, v{vB}
v_mov_b32 v{vK2a}, v{vB+1}
v_mov_b32 v{vVa}, v{vB+2}
''')
    for i in range(16): k(f'v_sub_f32 v{M+i}, 0, v{T}')
    for i in range(16): k(f'v_mov_b32 v{O+i}, 0')
    k(f's_mov_b32 s{sCnt}, 32')
    cM = f'v[{M}:{M+15}]'
    pre(cM)
    k.label('L_att_fb2')
    body(c=cM)
    k(f's_sub_u32 s{sCnt}, s{sCnt}, 1\ns_cmp_lg_u32 s{sCnt}, 0\ns_cbranch_scc1 L_att_fb2')
    post()
    k(f'''
s_nop 15
v_mov_b32 v{T}, v{O+10}
v_mov_b32 v{T+1}, v{O+10}
s_nop 1
v_permlane32_swap_b32 v{T}, v{T+1}
s_nop 1
s_branch L_att_epi
''')
    k.label(End)
    k('s_endpgm')
    return k
```

```python
import sys
from k2_qkv import gen_qkv, QKV_LDS
from k3_attn import *
from k2_sk import *
from k2_win import *
from k2_wsp import *
P = 'p' in sys.argv[1:]
k1 = gen_qkv(P)
k2 = gen_attn(P, 'fb' in sys.argv[1:])
k3, b3, l3 = gen_sk(3, P)
k4 = gen_win(P)
k6 = gen_wsp3(P)
k7, b7, l7 = gen_sk(7, P)
build_file([(k1, (256,1,1), (256,1,1), QKV_LDS), (k2, (256,1,1), (512,1,1), ATT_LDS), (k3, (256,1,1), (b3,1,1), l3), (k4, (256,1,1), (256,1,1), WIN_LDS),
  (k6, (256,1,1), (256,1,1), WSP_LDS), (k7, (256,1,1), (b7,1,1), l7)], 'g7fb.s' if 'fb' in sys.argv[1:] else 'g7.s')
```

```python
from common import *
WS_O = 9 * MB
WS_H = 12 * MB
WS_HS = 15 * MB
WS_CS = 15 * MB + 512 * 1024
WS_CNT = 15 * MB + 768 * 1024
WS_Z1 = 16 * MB
WS_Z2 = 26 * MB
WS_ST = 36 * MB
WS_U = 40 * MB
WS_WIN = 50 * MB
WS_WOUT = 56 * MB
WS_WO = 59 * MB
WS_WSP = 60 * MB
WS_END = 69 * MB
ONES = '0x3f803f80'

def dma_pattern(k, vDma, vLane, T, rowb, kind='N', n=9, q0=0):
    for j in range(n):
        k(f'''
v_add_u32 v{T}, {q0 + 64*j}, v{vLane}
v_mul_u32_u24 v{T+1}, 3641, v{T}
v_lshrrev_b32 v{T+1}, 16, v{T+1}
v_mul_u32_u24 v{T+2}, 18, v{T+1}
v_sub_u32 v{T+2}, v{T}, v{T+2}
v_and_b32 v{T+3}, 8, v{T+1}
v_xor_b32 v{T+3}, v{T+3}, v{T+2}
v_cmp_gt_u32 vcc, 16, v{T+2}
''')
        if kind == 'P1':
            k(f'''
v_lshrrev_b32 v{T+4}, 4, v{T+1}
v_mul_u32_u24 v{T+4}, 18, v{T+4}
v_and_b32 v{T+5}, 3, v{T+1}
v_add_u32 v{T+4}, v{T+4}, v{T+5}
v_bfe_u32 v{T+5}, v{T+1}, 3, 1
v_lshl_add_u32 v{T+4}, v{T+5}, 2, v{T+4}
v_bfe_u32 v{T+5}, v{T+1}, 2, 1
v_lshl_add_u32 v{T+1}, v{T+5}, 3, v{T+4}
''')
        elif kind == 'P2':
            k(f'''
v_lshrrev_b32 v{T+4}, 1, v{T+1}
v_mul_u32_u24 v{T+4}, 18, v{T+4}
v_and_b32 v{T+5}, 1, v{T+1}
v_add3_u32 v{T+1}, v{T+4}, v{T+5}, 16
''')
        else:
            k('s_nop 0')
        k(f'''
v_mul_u32_u24 v{T+1}, {rowb}, v{T+1}
v_cndmask_b32 v{T+2}, v{T+2}, v{T+3}, vcc
v_lshl_add_u32 v{vDma+j}, v{T+2}, 4, v{T+1}
''')

def tr_addr(k, vTrA, vLane, vTl, vG, T, sBase=None):
    k(f'''
v_lshrrev_b32 v{T}, 2, v{vTl}
v_lshl_add_u32 v{T}, v{vG}, 3, v{T}
v_mul_u32_u24 v{T}, 288, v{T}
v_and_b32 v{T+1}, 3, v{vLane}
v_lshl_add_u32 v{vTrA+2}, v{T+1}, 3, v{T}
''')
    if sBase is not None: k(f'v_add_u32 v{vTrA+2}, s{sBase}, v{vTrA+2}')
    k(f'''
v_and_b32 v{T+1}, 1, v{vG}
v_lshlrev_b32 v{T+1}, 7, v{T+1}
v_add_u32 v{vTrA}, v{vTrA+2}, v{T+1}
v_sub_u32 v{vTrA+1}, v{vTrA+2}, v{T+1}
''')

def gen_retile(k, End, wreg):
    vm = VM(k)
    vLane, vTl, vG, vL16 = 1, 2, 3, 4
    vTr = 5
    vDma = 8
    vDma2 = 17
    FR = 28
    CS = 100
    vOn = 110
    T = 112
    sW, sGw, sTmp, sLb, sSrc, sDst = 40, 41, 44, 48, 49, 50
    k(f'''
v_and_b32 v{vLane}, 63, v0
v_lshrrev_b32 v{T}, 6, v0
v_and_b32 v{vTl}, 15, v0
v_readfirstlane_b32 s{sW}, v{T}
v_lshrrev_b32 v{vG}, 4, v{vLane}
v_lshlrev_b32 v{vL16}, 4, v{vLane}
s_sub_u32 s{sGw}, s2, 192
s_lshl_b32 s{sGw}, s{sGw}, 2
s_add_u32 s{sGw}, s{sGw}, s{sW}
s_mul_i32 s{sLb}, s{sW}, {wreg}
''')
    srd_ws(k, 32, 0, WS_END)
    tr_addr(k, vTr, vLane, vTl, vG, T, sLb)
    def dma(u, soff, vd):
        for j in range(9):
            k(f's_add_u32 m0, s{sLb}, {(u%3)*9216 + j*1024}')
            k(f's_add_u32 s{sTmp+1}, s{sSrc}, {soff}' if not isinstance(soff, str) else f's_mov_b32 s{sTmp+1}, {soff}')
            k(f'buffer_load_dwordx4 v{vd+j}, s[28:31], s{sTmp+1} offen lds')
            vm.issue(f'u{u}')
    def proc(u, doff, cs=False, nxt=None):
        vm.wait(f'u{u}')
        fb = FR + 36 * (u % 2)
        for jt in range(9):
            va = vTr + (0 if jt < 4 else (1 if jt < 8 else 2))
            for h in range(2):
                k(f'ds_read_b64_tr_b16 v[{fb+4*jt+2*h}:{fb+4*jt+2*h+1}], v{va} offset:{(u%3)*9216 + 4*h*288 + jt*32}')
        k(f's_add_u32 s{sTmp+2}, s{sDst}, {doff}' if not isinstance(doff, str) else f's_mov_b32 s{sTmp+2}, {doff}')
        k(f's_add_u32 s{sTmp+3}, s{sTmp+2}, 4096')
        k('s_waitcnt lgkmcnt(0)')
        if nxt: nxt()
        for jt in range(9):
            if jt == 8: k(f's_add_u32 s{sTmp+3}, s{sTmp+3}, 4096')
            k(f'buffer_store_dwordx4 v[{fb+4*jt}:{fb+4*jt+3}], v{vL16}, s[32:35], s{sTmp+2 if jt < 4 else sTmp+3} offen offset:{(jt%4)*1024}')
            if cs:
                for i in range(4):
                    k(f'v_dot2_f32_bf16 v{CS+jt}, v{fb+4*jt+i}, v{vOn}, v{CS+jt}')
    k(f's_cmp_ge_u32 s{sGw}, 192\ns_cbranch_scc1 L_rt_b')
    srd_in(k, 28, 4, 576 * 4608 * 2)
    dma_pattern(k, vDma, vLane, T, 9216)
    k(f'''
s_mul_i32 s{sTmp}, s{sGw}, 10923
s_lshr_b32 s{sTmp}, s{sTmp}, 16
s_mul_i32 s{sTmp+1}, s{sTmp}, 6
s_sub_u32 s{sTmp+1}, s{sGw}, s{sTmp+1}
s_mul_i32 s{sSrc}, s{sTmp+1}, {3*32*9216}
s_mul_i32 s{sTmp+2}, s{sTmp}, 288
s_add_u32 s{sSrc}, s{sSrc}, s{sTmp+2}
s_mul_i32 s{sDst}, s{sGw}, {3*9216}
s_add_u32 s{sDst}, s{sDst}, {WS_WIN}
s_mul_i32 s51, s{sTmp+1}, {4608*4}
s_mul_i32 s{sTmp+2}, s{sTmp}, 576
s_add_u32 s51, s51, s{sTmp+2}
s_add_u32 s51, s51, {WS_CS}
v_mov_b32 v{vOn}, {ONES}
''')
    for jt in range(9): k(f'v_mov_b32 v{CS+jt}, 0')
    for u in range(3): dma(u, u * 32 * 9216, vDma)
    for u in range(3): proc(u, u * 9216, cs=True)
    for jt in range(9):
        t = T + 2 * (jt % 4)
        k(f'''
v_mov_b32 v{t}, v{CS+jt}
v_mov_b32 v{t+1}, v{CS+jt}
s_nop 1
v_permlane32_swap_b32 v{t}, v{t+1}
v_add_f32 v{t}, v{t}, v{t+1}
v_mov_b32 v{t+1}, v{t}
s_nop 1
v_permlane16_swap_b32 v{t}, v{t+1}
v_add_f32 v{CS+jt}, v{t}, v{t+1}
''')
    k(f'v_lshlrev_b32 v{T+8}, 2, v{vTl}\ns_mov_b64 exec, 0xffff')
    for jt in range(9):
        k(f'buffer_store_dword v{CS+jt}, v{T+8}, s[32:35], s51 offen offset:{64*jt}')
    k(f's_branch {End}')
    k.label('L_rt_b')
    vm.q = []
    k(f's_cmp_ge_u32 s{sGw}, 240\ns_cbranch_scc1 L_rt_c')
    srd_in(k, 28, 7, 2304 * 576 * 2)
    dma_pattern(k, vDma, vLane, T, 1152)
    k(f'''
s_sub_u32 s{sGw}, s{sGw}, 192
s_mul_i32 s{sTmp}, s{sGw}, 5462
s_lshr_b32 s{sTmp}, s{sTmp}, 16
s_mul_i32 s{sTmp+1}, s{sTmp}, 12
s_sub_u32 s{sTmp+1}, s{sGw}, s{sTmp+1}
s_mul_i32 s{sSrc}, s{sTmp+1}, {6*32*1152}
s_mul_i32 s{sTmp+2}, s{sTmp}, 288
s_add_u32 s{sSrc}, s{sSrc}, s{sTmp+2}
s_mul_i32 s{sDst}, s{sGw}, {6*9216}
s_add_u32 s{sDst}, s{sDst}, {WS_WOUT}
''')
    for u in range(3): dma(u, u * 32 * 1152, vDma)
    for u in range(6):
        proc(u, u * 9216, nxt=(lambda u=u: dma(u + 3, (u + 3) * 32 * 1152, vDma)) if u + 3 < 6 else None)
    k(f's_branch {End}')
    k.label('L_rt_c')
    vm.q = []
    srd_in(k, 28, 2, 576 * 576 * 2)
    dma_pattern(k, vDma, vLane, T, 1152, 'P1')
    dma_pattern(k, vDma2, vLane, T, 1152, 'P2')
    k(f'''
s_sub_u32 s{sGw}, s{sGw}, 240
s_lshr_b32 s{sTmp}, s{sGw}, 2
s_and_b32 s{sTmp+1}, s{sGw}, 3
s_mul_i32 s{sSrc}, s{sTmp+1}, {4*36*1152}
s_mul_i32 s{sTmp+2}, s{sTmp}, 288
s_add_u32 s{sSrc}, s{sSrc}, s{sTmp+2}
s_mul_i32 s{sDst}, s{sTmp}, {18*9216}
s_add_u32 s{sDst}, s{sDst}, {WS_WO}
s_and_b32 s{sTmp+3}, s{sGw}, 1
s_mul_i32 s52, s{sTmp+3}, {18*16*1152}
s_add_u32 s52, s52, s{sTmp+2}
s_mul_i32 s53, s{sTmp+3}, 9216
s_add_u32 s53, s53, s{sDst}
s_add_u32 s53, s53, {16*9216}
s_mul_i32 s{sTmp+1}, s{sTmp+1}, {4*9216}
s_add_u32 s{sDst}, s{sDst}, s{sTmp+1}
v_mov_b32 v{T+8}, -1.0
v_mov_b32 v{T+9}, -1.0
v_mov_b32 v{T+10}, -1.0
v_mov_b32 v{T+11}, -1.0
s_lshl_b32 s{sTmp}, s{sGw}, 14
s_add_u32 s{sTmp}, s{sTmp}, {WS_ST}
''')
    for i in range(16):
        k(f'buffer_store_dwordx4 v[{T+8}:{T+11}], v{vL16}, s[32:35], s{sTmp} offen offset:{(i%4)*1024}')
        if i % 4 == 3: k(f's_add_u32 s{sTmp}, s{sTmp}, 4096')
    k(f'v_lshlrev_b32 v{T+12}, 8, v{vLane}\nv_mov_b32 v{T+13}, 0')
    for i in range(3):
        k(f's_mov_b32 s{sTmp}, {WS_CNT + 16384*i}\nbuffer_store_dword v{T+13}, v{T+12}, s[32:35], s{sTmp} offen')
    for u in range(3): dma(u, u * 36 * 1152, vDma)
    proc(0, 0, nxt=lambda: dma(3, 3 * 36 * 1152, vDma))
    proc(1, 9216, nxt=lambda: dma(4, 's52', vDma2))
    proc(2, 2 * 9216); proc(3, 3 * 9216); proc(4, 's53')
    k(f's_branch {End}')


import os
ASSIGN = os.environ.get("NOASG") is None
def assign(k, kidx, lds_off):
    if not ASSIGN: return
    n = k.name
    k(f'''
s_getreg_b32 s28, hwreg(HW_REG_XCC_ID)
v_readfirstlane_b32 s30, v0
s_and_b32 s28, s28, 7
s_lshr_b32 s29, s2, 6
s_lshl_b32 s28, s28, 2
s_add_u32 s28, s28, s29
v_mov_b32 v2, {lds_off}
s_cmp_lg_u32 s30, 0
s_cbranch_scc1 L_asg_w_{n}
s_mov_b64 exec, 1
s_waitcnt lgkmcnt(0)
''')
    srd_ws(k, 24, WS_CNT + kidx * 8192, 8192)
    k(f'''
L_asg_t_{n}:
v_mov_b32 v1, 1
s_lshl_b32 s29, s28, 8
buffer_atomic_add v1, off, s[24:27], s29 sc0
s_add_u32 s31, s28, 1
s_waitcnt vmcnt(0)
v_readfirstlane_b32 s29, v1
s_cmp_lt_u32 s29, 8
s_cbranch_scc1 L_asg_g_{n}
s_and_b32 s28, s31, 31
s_branch L_asg_t_{n}
L_asg_g_{n}:
s_and_b32 s30, s28, 3
s_lshl_b32 s30, s30, 3
s_add_u32 s30, s30, s29
s_lshl_b32 s30, s30, 3
s_lshr_b32 s29, s28, 2
s_add_u32 s29, s29, s30
v_mov_b32 v1, s29
ds_write_b32 v2, v1
s_mov_b64 exec, -1
s_waitcnt lgkmcnt(0)
L_asg_w_{n}:
s_barrier
ds_read_b32 v1, v2
s_waitcnt lgkmcnt(0)
v_readfirstlane_b32 s2, v1
''')
```
